```python
import torch

def _softmax(x, axis=-1):
    return torch.softmax(x, dim=axis)
def _gelu(x):
    return torch.nn.functional.gelu(x, approximate="tanh")
def _silu(x):
    return torch.nn.functional.silu(x)
def _sigmoid(x):
    return torch.sigmoid(x)
def _layernorm(x, axis=-1, eps=1e-5):
    m = x.mean(dim=axis, keepdim=True)
    v = x.var(dim=axis, keepdim=True, unbiased=False)
    return (x - m) / torch.sqrt(v + eps)
def _scatter_add(tgt, idx, src, axis=0):
    return tgt.clone().index_add_(axis, idx, src)
def _segment_sum(src, seg, n):
    out = torch.zeros((n,) + src.shape[1:], dtype=src.dtype)
    return out.index_add_(0, seg, src)
def _pad(x, pw):
    flat = tuple(v for pair in reversed(pw) for v in pair)
    return torch.nn.functional.pad(x, flat)

kernel_name = 'concat_heads__mha_block_cached__gqa_block_cached__near_ridge'

def setup_inputs():

    _w = (lambda a: (lambda t: t.to(torch.bfloat16) if t.is_floating_point() else t)(torch.as_tensor(a)))
    def _A_setup():
        B, Sq, D = 16, 144, 512
        H, Sk, Dh = 32, 512, 128
        return {
            "x": _w((lambda *s: torch.randn(*s, dtype=torch.bfloat16) * 0.8)(B, Sq, D)),
            "k_cache": _w((lambda *s: torch.randn(*s, dtype=torch.bfloat16) * 0.8)(B, H, Sk, Dh)),
            "v_cache": _w((lambda *s: torch.randn(*s, dtype=torch.bfloat16) * 0.05)(B, H, Sk, Dh)),
            "wq": _w((lambda *s: torch.randn(*s, dtype=torch.bfloat16) * 0.8)(D, H * Dh) * (D ** -0.5)),
            "wo": _w((lambda *s: torch.randn(*s, dtype=torch.bfloat16) * 0.05)(H * Dh, D) * ((H * Dh) ** -0.5)),
        }
    _A_in = _A_setup()

    def _B_setup():
        B, Sq, D = 16, 144, 512
        Hq, Hkv, Sk, Dh = 32, 32, 512, 128
        assert Hq % Hkv == 0, (Hq, Hkv)
        return {
            "x": _w((lambda *s: torch.randn(*s, dtype=torch.bfloat16) * 0.8)(B, Sq, D)),
            "k_cache": _w((lambda *s: torch.randn(*s, dtype=torch.bfloat16) * 0.8)(B, Hkv, Sk, Dh)),
            "v_cache": _w((lambda *s: torch.randn(*s, dtype=torch.bfloat16) * 0.05)(B, Hkv, Sk, Dh)),
            "wq": _w((lambda *s: torch.randn(*s, dtype=torch.bfloat16) * 0.8)(D, Hq * Dh) * (D ** -0.5)),
            "wo": _w((lambda *s: torch.randn(*s, dtype=torch.bfloat16) * 0.05)(Hq * Dh, D) * ((Hq * Dh) ** -0.5)),
        }
    _B_in = _B_setup()

    return {
        "A_x": _A_in["x"],
        "A_k_cache": _A_in["k_cache"],
        "A_v_cache": _A_in["v_cache"],
        "A_wq": _A_in["wq"],
        "A_wo": _A_in["wo"],
        "B_x": _B_in["x"],
        "B_k_cache": _B_in["k_cache"],
        "B_v_cache": _B_in["v_cache"],
        "B_wq": _B_in["wq"],
        "B_wo": _B_in["wo"],
    }

def reference(A_x, A_k_cache, A_v_cache, A_wq, A_wo, B_x, B_k_cache, B_v_cache, B_wq, B_wo):
    def _A_ref(x, k_cache, v_cache, wq, wo):
        B, Sq, D = x.shape
        H, Dh = 32, 128
        q = (lambda x, *d: x.permute(*d))((x @ wq).reshape(B, Sq, H, Dh), 0, 2, 1, 3)
        scores = torch.einsum("bhqd,bhkd->bhqk", q, k_cache) * (Dh ** -0.5)
        p = _softmax(scores, axis=-1)
        o = torch.einsum("bhqk,bhkd->bhqd", p, v_cache)
        return (lambda x, *d: x.permute(*d))(o, 0, 2, 1, 3).reshape(B, Sq, H * Dh) @ wo

    def _B_ref(x, k_cache, v_cache, wq, wo):
        B, Sq, D = x.shape
        Hq, Dh = 32, 128
        Hkv = k_cache.shape[1]
        rep = Hq // Hkv
        q = (lambda x, *d: x.permute(*d))((x @ wq).reshape(B, Sq, Hq, Dh), 0, 2, 1, 3)
        k = (lambda x, n, axis: torch.repeat_interleave(x, n, dim=axis))(k_cache, rep, axis=1)
        v = (lambda x, n, axis: torch.repeat_interleave(x, n, dim=axis))(v_cache, rep, axis=1)
        scores = torch.einsum("bhqd,bhkd->bhqk", q, k) * (Dh ** -0.5)
        p = _softmax(scores, axis=-1)
        o = torch.einsum("bhqk,bhkd->bhqd", p, v)
        return (lambda x, *d: x.permute(*d))(o, 0, 2, 1, 3).reshape(B, Sq, Hq * Dh) @ wo

    a = _A_ref(A_x, A_k_cache, A_v_cache, A_wq, A_wo)
    b = _B_ref(B_x, B_k_cache, B_v_cache, B_wq, B_wo)
    return torch.concatenate([a, b], axis=-1)
```

```python
import heapq

class Op:
    __slots__ = ('kind', 'text', 'rd', 'wr', 'crd', 'cost', 'preds', 'succs', 'idx', 'dl', 'npred', 'pos', 't',
                 'k', 'soft', 'seq', 'prio', 'tag')
    def __init__(s, kind, text, rd=(), wr=(), crd=(), cost=1, prio=None, tag=None):
        s.kind = kind; s.text = text; s.rd = tuple(rd); s.wr = tuple(wr); s.crd = tuple(crd)
        s.cost = cost; s.preds = {}; s.succs = []; s.pos = None; s.t = None; s.prio = prio; s.tag = tag
        s.seq = None

VALU = ('valu', 'trans', 'perm')
DS = ('dsr', 'dsw')
VM = ('dma', 'store', 'load')

def regs(c, a, n=1): return [f'{c}{a+i}' for i in range(n)]

class Prog:
    def __init__(s):
        s.ops = []; s.lastw = {}; s.readers = {}
        s.last_salu = None; s.last_vm = None; s.last_bar = None; s.ds_since_bar = []
        s.DSLAT = 7.0; s.DMAGAP = 64
    def edge(s, a, b, states=0, lat=0, wait=None, dgap=0.0):
        if a is b: return
        e = b.preds.get(a)
        if e is None:
            b.preds[a] = [states, lat, wait, dgap]; a.succs.append(b)
        else:
            e[0] = max(e[0], states); e[1] = max(e[1], lat); e[2] = e[2] or wait; e[3] = max(e[3], dgap)
    def add(s, op):
        op.idx = len(s.ops)
        k = op.kind
        for r in op.rd:
            p = s.lastw.get(r)
            if p is not None: s.raw(p, op, r)
        for r in op.wr:
            p = s.lastw.get(r)
            if p is not None: s.waw(p, op, r)
            for q in s.readers.get(r, ()): s.war(q, op, r)
        for r in op.wr:
            s.lastw[r] = op; s.readers[r] = []
        for r in op.rd:
            if r not in op.wr or True: s.readers.setdefault(r, []).append(op)
        if k == 'salu':
            if s.last_salu: s.edge(s.last_salu, op, dgap=1.0)
            s.last_salu = op
        if k in VM:
            if s.last_vm: s.edge(s.last_vm, op, lat=s.DMAGAP, dgap=1.0)
            s.last_vm = op
        if k in DS:
            if s.last_bar: s.edge(s.last_bar, op, dgap=0.5)
            s.ds_since_bar.append(op)
        if k == 'bar':
            for d in s.ds_since_bar: s.edge(d, op, lat=88, wait='lgkm', dgap=5.5)
            if s.last_bar: s.edge(s.last_bar, op)
            s.ds_since_bar = []; s.last_bar = op
        s.ops.append(op)
        return op
    def raw(s, p, c, r):
        pk, ck = p.kind, c.kind
        if pk == 'mfma':
            if ck == 'mfma':
                if r in c.crd and p.wr == c.crd: s.edge(p, c)
                else: s.edge(p, c, states=8)
            else: s.edge(p, c, states=8, lat=44, dgap=0)
        elif pk in VALU:
            if ck == 'mfma': s.edge(p, c, states=2, dgap=1.0)
            elif ck == 'perm': s.edge(p, c, states=2, lat=12, dgap=0.5 * p.cost + 0.5)
            elif ck == 'salu': s.edge(p, c, states=4, lat=20, dgap=1.5)
            elif ck in VALU: s.edge(p, c, states=(1 if pk == 'trans' else (2 if r[0] == 's' or r == 'vcc' else 0)), lat=4 * p.cost + 4, dgap=0.5 * p.cost)
            else: s.edge(p, c, states=(5 if r[0] == 's' else 1), lat=12, dgap=1.0)
        elif pk == 'dsr':
            s.edge(p, c, lat=96, wait='lgkm', dgap=s.DSLAT)
        elif pk in ('dma', 'load', 'store'):
            s.edge(p, c, wait='vm', dgap=2.0)
        elif pk == 'salu':
            s.edge(p, c, states=(1 if r == 'm0' else 0), dgap=0.0)
        else:
            s.edge(p, c)
    def waw(s, p, c, r):
        pk, ck = p.kind, c.kind
        if pk == 'mfma':
            if ck == 'mfma': s.edge(p, c)
            else: s.edge(p, c, states=8, lat=44)
        elif pk == 'dsr': s.edge(p, c, lat=96, wait='lgkm', dgap=s.DSLAT)
        elif pk == 'load': s.edge(p, c, wait='vm')
        elif pk in VALU and ck == 'mfma': s.edge(p, c, states=2, dgap=1.0)
        else: s.edge(p, c)
    def war(s, q, c, r):
        qk, ck = q.kind, c.kind
        if qk == 'mfma' and r in q.crd and ck != 'mfma': s.edge(q, c, states=3)
        elif qk == 'store' and r[0] in 'va': s.edge(q, c, states=2, dgap=0.5)
        elif qk == 'dsr' and r[0] == '$': s.edge(q, c, lat=96, wait='lgkm', dgap=s.DSLAT)
        else: s.edge(q, c, dgap=(0.5 if ck == 'mfma' else 0.0))

    def schedule(s, vm_before=0, verbose=True):
        ops = s.ops
        k = 0
        for o in ops:
            if o.kind == 'mfma': o.k = k; k += 1
            else: o.k = k
        nm = k
        for o in reversed(ops):
            if o.kind == 'mfma': o.dl = float(o.k)
            else:
                d = None
                for c in o.succs:
                    x = c.dl - c.preds[o][3]
                    if d is None or x < d: d = x
                if d is None: d = o.k + 24.0
                if o.prio is not None: d = min(d, o.k + o.prio)
                o.dl = d
        for o in ops: o.npred = len(o.preds); o.soft = 0
        ready = []
        out = []
        st = dict(pos=0, t=0, ds=0, vm=vm_before, dscov=0, vmcov=0, nops=0, extra=0, waits=0, stall=0)
        def release(o):
            for c in o.succs:
                e = c.preds[o]
                c.soft = max(c.soft, o.t + e[1])
                c.npred -= 1
                if c.npred == 0 and c.kind != 'mfma': ready.append(c)
        def hard_gap(o, pos):
            n = 0
            for p, e in o.preds.items():
                if e[0]: n = max(n, e[0] - (pos - p.pos - 1))
            return n
        def need_wait(o):
            lg = vm = None
            for p, e in o.preds.items():
                if p.pos is None: continue
                if e[2] == 'lgkm' and p.seq > st['dscov']: lg = max(lg or 0, p.seq)
                if e[2] == 'vm' and p.seq > st['vmcov']: vm = max(vm or 0, p.seq)
            return lg, vm
        def emit_raw(text, cost):
            out.append(text); st['pos'] += 1; st['t'] += cost
        def emit_wait(lg, vm, cost):
            parts = []
            if vm is not None:
                n = min(st['vm'] - vm, 63); parts.append(f'vmcnt({n})'); st['vmcov'] = st['vm'] - n
            if lg is not None:
                n = min(st['ds'] - lg, 15); parts.append(f'lgkmcnt({n})'); st['dscov'] = st['ds'] - n
            emit_raw('s_waitcnt ' + ' '.join(parts), cost); st['waits'] += 1
        def emit(o, cost):
            lg, vm = need_wait(o)
            if lg is not None or vm is not None:
                emit_wait(lg, vm, 4)
            if o.soft > st['t'] and (o.kind in ('mfma', 'bar') or lg is not None):
                st['stall'] += o.soft - st['t']; st['t'] = o.soft
            n = hard_gap(o, st['pos'])
            if n > 0:
                out.append(f's_nop {n-1}'); st['pos'] += n; st['t'] += 4 * n; st['nops'] += n
            o.pos = st['pos']; o.t = st['t']
            if o.kind in DS: st['ds'] += 1; o.seq = st['ds']
            if o.kind in VM: st['vm'] += 1; o.seq = st['vm']
            emit_raw(o.text, cost)
            release(o)
        for o in ops:
            if o.npred == 0 and o.kind != 'mfma': ready.append(o)
        mf = [o for o in ops if o.kind == 'mfma']
        order = {'dsr': 0, 'dsw': 1, 'dma': 2, 'load': 2, 'store': 3, 'valu': 4, 'trans': 4, 'perm': 4}
        def forced(target):
            while (target.npred > 0 if target is not None else ready):
                assert ready, 'deadlock'
                lim = (target.k + 0.01) if target is not None else 1e18
                cand = [o for o in ready]
                t = st['t']; pos = st['pos']
                good = [o for o in cand if o.soft <= t + 2 and hard_gap(o, pos) == 0]
                if good: o = min(good, key=lambda o: (o.dl, o.idx))
                else:
                    urg = [o for o in cand if o.dl <= lim] or cand
                    o = min(urg, key=lambda o: (max(o.soft - t, 4 * hard_gap(o, pos)), o.dl))
                ready.remove(o)
                c = 20 if o.kind == 'bar' else 4 * o.cost
                emit(o, c); st['extra'] += c
        marks = []
        for i, m in enumerate(mf):
            forced(m)
            if i and st['t'] < mf[i-1].t + 16: st['t'] = mf[i-1].t + 16
            emit(m, 4)
            if m.tag: marks.append((m.tag, st['t'], i))
            t0 = m.t; nxt = mf[i+1] if i + 1 < nm else None
            scal = None
            bars = [o for o in ready if o.kind == 'bar' and (o.soft <= t0 + 6 or o.dl <= i)]
            if bars:
                b = bars[0]; ready.remove(b)
                lg, vm = need_wait(b)
                if lg is not None or vm is not None: emit_wait(lg, vm, 4)
                emit(b, 16); st['extra'] += 16
                scal = True
            tv = max(st['t'], t0 + 8)
            pick = []; slots = 0
            cand = [o for o in ready if o.kind not in ('salu', 'bar') and o.soft <= tv + 2 and hard_gap(o, st['pos']) == 0]
            cand.sort(key=lambda o: ((-1e9 if o.kind in ('dma', 'load') else o.dl), o.idx))
            if cand:
                first = cand[0]
                ones = [o for o in cand if o.cost == 1]
                twos = [o for o in cand if o.cost >= 2]
                if first.cost >= 2: pick = [first]
                elif len(ones) >= 2: pick = ones[:2]
                elif twos and first.dl > i + 2 and first.kind not in ('dma', 'load'): pick = [twos[0]]
                else: pick = [first]
                for o in cand:
                    if o not in pick and o.dl <= i + 0.25 and o.kind not in VM: pick.append(o)
            pick.sort(key=lambda o: (order[o.kind], o.dl, o.idx))
            lg = vm = None
            for o in pick + ([nxt] if nxt is not None else []):
                a, b2 = need_wait(o)
                if o is nxt and nxt.soft > t0 + 16 + 12 and False: continue
                if a is not None: lg = max(lg or 0, a)
                if b2 is not None: vm = max(vm or 0, b2)
            if lg is not None or vm is not None:
                emit_wait(lg, vm, 4)
                if scal: st['extra'] += 4
                scal = True
            sal = [o for o in ready if o.kind == 'salu' and hard_gap(o, st['pos']) == 0]
            if sal and (not scal or sum(o.cost for o in pick) < 2 or sal[0].dl <= i):
                o = sal[0]; ready.remove(o); emit(o, 4)
            if st['t'] < t0 + 8: st['t'] = t0 + 8
            for o in pick:
                ready.remove(o); emit(o, 4 * o.cost)
            if st['t'] > t0 + 16: st['extra'] += 0
        forced(None)
        assert all(o.pos is not None for o in ops)
        if verbose:
            print(f"; sched: mfma={nm} instrs={st['pos']} est_cycles={st['t']} ideal={16*nm} nops={st['nops']} waits={st['waits']} stall={st['stall']}")
            prev = None
            for tag, t, i in marks:
                if prev: print(f";   {prev[0]}: {t-prev[1]} cyc, {i-prev[2]} mfma")
                prev = (tag, t, i)
        return out, st
```

```python
import sys, struct, math
from sched import *

KN = 'concat_heads__mha_block_cached__gqa_block_cached__near_ridge'
def f2u(x): return struct.unpack('<I', struct.pack('<f', x))[0]
CSCALE = f2u(math.log2(math.e) / math.sqrt(128.0))

KS = [0, 16384, 32768]; XB = 49152
VS = [65536, 81920, 98304]
XR = 114688; PR = XR + 8192; GB = XR + 12288
WS_ = [131072, 147456]
LDS_BYTES = 163840
XWIN = 32768
OA = 0; QA = 72; SB = 144; SR = 160; PB = 164; MB = 196; PRW = 208
vK = 210; vKr = 214; vV = 218; vW = 226; vX = 234; vXr = 236; vPw = 238; vL16 = 239; vGw = 240
vDK = 241; vDW = 243; vDX = 245; vDXr = 246; TMP = 247
vPo = QA + 56
vSt = vW
def RG(u): return 48 * u
aONE = 192; aPR = 196; aL = 204; aPOOL = 216
sK = 8; sV = 12; sWq = 16; sX = 20; sWo = 24; sWS = 28; sOUT = 32
sT = 36; sW = 44; sW4K = 45; sW1K = 46; sTW = 64; sTX = 72; sTC = 80
sTMP = 50; sFLAG = 60

def rr(c, a, n): return f'{c}[{a}:{a+n-1}]' if n > 1 else f'{c}{a}'

class G:
    def __init__(s, opt):
        s.p = Prog(); s.opt = opt
        s.pool = []; s.lastuse = {}; s.tick = 0; s.stmp = 0; s.tagnext = None
    def mfma(s, d, a, b, c=None):
        D = regs(d[0], d[1], 4)
        if c == 0: ct = '0'; C = []
        else:
            c = c or d; ct = rr(c[0], c[1], 4); C = regs(c[0], c[1], 4)
        o = Op('mfma', f'M {rr(d[0],d[1],4)},{rr(a[0],a[1],4)},{rr(b[0],b[1],4)},{ct}',
               rd=regs(a[0], a[1], 4) + regs(b[0], b[1], 4) + C, wr=D, crd=C, tag=s.tagnext)
        s.tagnext = None
        return s.p.add(o)
    def valu(s, text, rd, wr, kind='valu', cost=1, prio=None): return s.p.add(Op(kind, text, rd, wr, cost=cost, prio=prio))
    def salu(s, text, rd=(), wr=()): return s.p.add(Op('salu', text, rd, wr))
    def exp(s, v): return s.valu(f'E v{v}', [f'v{v}'], [f'v{v}'], 'trans', 2)
    def cvt(s, d, a, b): return s.valu(f'C v{d},v{a},v{b}', [f'v{a}', f'v{b}'], [f'v{d}'])
    def swap(s, n, a, b): return s.valu(f'v_permlane{n}_swap_b32 v{a},v{b}', [f'v{a}', f'v{b}'], [f'v{a}', f'v{b}'], 'perm', 2)
    def awr(s, a, v): return s.valu(f'v_accvgpr_write_b32 a{a},v{v}', [f'v{v}'], [f'a{a}'])
    def r128(s, d, addr, off, extra=()):
        assert 0 <= off < 65536, off
        return s.p.add(Op('dsr', f'R {rr(d[0],d[1],4)},v{addr},{off}', [f'v{addr}'] + list(extra), regs(d[0], d[1], 4)))
    def rtr(s, d, half, addr, off):
        assert 0 <= off < 65536, off
        return s.p.add(Op('dsr', f'T {rr(d[0],d[1]+2*half,2)},v{addr},{off}', [f'v{addr}'], regs(d[0], d[1] + 2 * half, 2)))
    def alloc(s):
        q = min(s.pool, key=lambda x: s.lastuse.get(x, -1))
        s.tick += 1; s.lastuse[q] = s.tick
        return q
    def stemp(s):
        s.stmp = (s.stmp + 1) % 8
        return sTMP + s.stmp
    def bar(s, tiles):
        rd = []
        for t in tiles: rd += [f'#{t}:{p}' for p in range(1 if t.startswith('xr') else 4)]
        for r in rd: assert r in s.p.lastw, r
        return s.p.add(Op('bar', 's_barrier', rd, []))
    def dma(s, name, p, voff, srd, soff, off, pol, after, priv=None):
        wr = [f'#{name}:{p}'] + ([f'${priv}:{p}'] if priv is not None else [])
        o = Op('dma', f'{"Dn" if pol else "D"} v{voff},s[{srd}:{srd+3}],s{soff},{off}', [f'v{voff}', f's{soff}', 'm0'], wr)
        s.p.add(o)
        if after is not None: s.p.edge(after, o)
        return o
    def ld_kv(s, which, n, after, priv=None):
        u, j = n >> 3, n & 7
        slot = (KS if which == 'K' else VS)[n % 3]
        s.salu(f's_add_u32 m0,s{sW4K},{slot}', wr=['m0'])
        t = s.stemp(); s.salu(f's_add_u32 s{t},s{sT+j},{u*131072}', wr=[f's{t}'])
        for p in range(4): s.dma(f'{which}{n}', p, vDK + (p & 1), sK if which == 'K' else sV, t, 1024 * p, 1, after, priv)
    def wslot(s, m): return [WS_[0], WS_[1], VS[2]][m % 3] if m < 6 else WS_[m % 2]
    def xslot(s, m): return [XB, VS[0], KS[2], VS[1]][m % 4] if m < 8 else XB
    def ld_w(s, m, after):
        u, D = m >> 3, m & 7
        s.salu(f's_add_u32 m0,s{sW4K},{s.wslot(m)}', wr=['m0'])
        for h in range(2):
            t = s.stemp(); s.salu(f's_add_u32 s{t},s{sTW+D},{u*256+h*129024}', wr=[f's{t}'])
            for p in (2 * h, 2 * h + 1): s.dma(f'W{m}', p, vDW + (p & 1), sWq, t, 1024 * p, 0, after)
    def ld_x(s, m):
        D = m & 7; loc = s.xslot(m)
        s.salu(f's_add_u32 m0,s{sW4K},{loc}', wr=['m0'])
        for p in range(4):
            if p: t = s.stemp(); s.salu(f's_add_u32 s{t},s{sTX+D},{7168*p}', wr=[f's{t}'])
            else: t = sTX + D
            s.dma(f'X{m}', p, vDX, sX, t, 1024 * p, 0, None, loc)
    def ld_xr(s, m2, after):
        s.salu(f's_add_u32 m0,s{sW1K},{XR+(m2&1)*4096}', wr=['m0'])
        s.dma(f'xr{m2}', 0, vDXr, sX, sTX + ((2 * m2) & 7), 0, 0, after)
    PSL = [XB, KS[2], KS[0], KS[1]]
    def ld_wo(s, n, after):
        c, u = n >> 2, n & 3
        s.salu(f's_add_u32 m0,s{sW4K},{s.PSL[n%4]}', wr=['m0'])
        for p in range(4):
            t = s.stemp(); s.salu(f's_add_u32 s{t},s{sTC+c},{u*131072+7168*p}', wr=[f's{t}'])
            s.dma(f'O{n}', p, vDX, sWo, t, 1024 * p, 0, after, XB if n == 0 else None)
    def xfrag(s, m): return (RG(2) + 24 * (m & 1)) if m < 8 else RG(m >> 3) + 24
    def rd_x(s, m):
        xf = s.xfrag(m); loc = s.xslot(m)
        for sg in range(2):
            for t in range(2):
                s.r128(('a', xf + (t * 2 + sg) * 4), vX + sg, loc - XWIN + t * 2048, [f'${loc}:{2*t}', f'${loc}:{2*t+1}'])
        for sg in range(2):
            s.r128(('a', xf + 16 + sg * 4), vXr + sg, ((m >> 1) & 1) * 4096 + (m & 1) * 2048)
    def qp(s, m, ul):
        acc = OA if m < 8 else QA
        xf = s.xfrag(m); slot = s.wslot(m)
        areg, base = (vW, WS_[0]) if slot >= WS_[0] else (vV, VS[0])
        fr = []
        for sg in range(2):
            f = s.alloc(); fr.append(f)
            for jj in range(2): s.rtr(f, jj, areg + ul, slot - base + (2 * sg + jj) * 4096)
        for t in range(3 if ul < 2 else 2):
            d = ('v', acc + t * 32 + ul * 4)
            for sg in range(2): s.mfma(d, fr[sg], ('a', xf + (t * 2 + sg) * 4), 0 if (m & 7) == 0 and sg == 0 else None)
    def qfin(s, u, pair, t):
        acc = (OA if u == 0 else QA) + t * 32 + pair * 8
        for i in range(8): s.valu(f'v_mul_f32 v{acc+i},{CSCALE:#x},v{acc+i}', [f'v{acc+i}'], [f'v{acc+i}'])
        for i in range(4): s.cvt(acc + i, acc + 2 * i, acc + 2 * i + 1)
        s.swap(16, acc, acc + 2); s.swap(16, acc + 1, acc + 3)
        if t < 2:
            for i in range(4): s.awr(RG(u) + (t * 4 + pair) * 4 + i, acc + i)
        else:
            s.p.add(Op('dsw', f'ds_write_b128 v{vGw},{rr("v",acc,4)}', [f'v{vGw}'] + regs('v', acc, 4), [], cost=5))
    def gather(s, u, first):
        for sl in range(first, 4):
            if sl:
                s.valu(f'v_xor_b32 v{TMP+5+sl},{sl*1024},v{vGw}', [f'v{vGw}'], [f'v{TMP+5+sl}'])
            s.r128(('a', RG(u) + 32 + 4 * sl), TMP + 5 + sl if sl else vGw, 0)
    def rowmax(s, src, t):
        a, b = TMP + 2 * t, TMP + 2 * t + 1
        V = lambda x: f'v{x}'
        s.valu(f'v_max3_f32 v{a},v{src},v{src+1},v{src+2}', regs('v', src, 3), [V(a)])
        s.valu(f'v_max_f32 v{a},v{a},v{src+3}', [V(a), V(src + 3)], [V(a)])
        for n in (16, 32):
            s.valu(f'v_mov_b32 v{b},v{a}', [V(a)], [V(b)])
            s.swap(n, a, b)
            s.valu(f'v_max_f32 v{a},v{a},v{b}', [V(a), V(b)], [V(a)])
        for i in range(4): s.valu(f'v_sub_f32 v{MB+4*t+i},0,v{a}', [V(a)], [V(MB + 4 * t + i)])
    def qk(s, n, kt):
        u = n >> 3; init = (n & 7) == 0 and kt == 0
        fr = [s.alloc() for _ in range(4)]
        for sl in range(4): s.r128(fr[sl], vK + sl, KS[n % 3] + kt * 4096)
        sb = SB + (kt & 1) * 8
        for t in range(3 if init else 2):
            d = ('v', sb + 4 * t if t < 2 else SR)
            for sl in range(4):
                s.mfma(d, fr[sl], ('a', RG(u) + (t * 4 + sl) * 4), None if sl else (0 if init else ('v', MB + 4 * t)))
        if init:
            for t in range(3): s.rowmax(sb + 4 * t if t < 2 else SR, t)
            for t in range(2):
                for i in range(4):
                    x = sb + 4 * t + i
                    s.valu(f'v_add_f32 v{x},v{x},v{MB+4*t}', [f'v{x}', f'v{MB+4*t}'], [f'v{x}'])
        for t in range(2):
            x = sb + 4 * t
            for i in range(4): s.exp(x + i)
            d = PB + (n & 1) * 16 + ((kt >> 1) * 2 + t) * 4 + (kt & 1) * 2
            s.cvt(d, x, x + 1); s.cvt(d + 1, x + 2, x + 3)
    def qkr(s, n):
        u = n >> 3
        fr = [s.alloc() for _ in range(4)]
        for sl in range(4): s.r128(fr[sl], vKr + sl, KS[n % 3])
        for sl in range(4): s.mfma(('v', SR), fr[sl], ('a', RG(u) + 32 + sl * 4), None if sl else ('v', MB + 8))
        for i in range(4): s.exp(SR + i)
        s.cvt(PRW, SR, SR + 1); s.cvt(PRW + 1, SR + 2, SR + 3)
        s.p.add(Op('dsw', f'ds_write_b64 v{vPw},v[{PRW}:{PRW+1}] offset:{(n&1)*2048}', [f'v{vPw}'] + regs('v', PRW, 2), [], cost=3))
    def rd_pr(s, n):
        for sg in range(2): s.r128(('a', aPR + 4 * sg), vL16, (n & 1) * 2048 + sg * 1024)
    def pfrag(s, n, sg, t): return ('v', PB + (n & 1) * 16 + (sg * 2 + t) * 4) if t < 2 else ('a', aPR + 4 * sg)
    def pv(s, n, ul):
        fr = []
        for sg in range(2):
            f = s.alloc(); fr.append(f)
            for jj in range(2): s.rtr(f, jj, vV + ul, VS[n % 3] - VS[0] + (2 * sg + jj) * 4096)
        for t in range(3 if ul < 2 else 2):
            for sg in range(2): s.mfma(('v', OA + t * 32 + ul * 4), fr[sg], s.pfrag(n, sg, t), 0 if (n & 7) == 0 and sg == 0 else None)
    def ones(s, n, ts=(2, 0, 1)):
        for t in ts:
            for sg in range(2): s.mfma(('a', aL + 4 * t), ('a', aONE), s.pfrag(n, sg, t), 0 if (n & 7) == 0 and sg == 0 else None)
    def ofin_l(s, u):
        for t in range(3):
            x = TMP + 6 + t
            s.valu(f'v_accvgpr_read_b32 v{x},a{aL+4*t}', [f'a{aL+4*t}'], [f'v{x}'])
            s.valu(f'v_rcp_f32 v{x},v{x}', [f'v{x}'], [f'v{x}'], 'trans', 2)
    def ofin(s, u, pair, t):
        acc = OA + t * 32 + pair * 8; x = TMP + 6 + t
        for i in range(8): s.valu(f'v_mul_f32 v{acc+i},v{x},v{acc+i}', [f'v{acc+i}', f'v{x}'], [f'v{acc+i}'])
        for i in range(4): s.cvt(acc + i, acc + 2 * i, acc + 2 * i + 1)
        for i in range(4): s.awr(RG(u) + (t * 4 + pair) * 4 + i, acc + i)
    def ofin_all(s, u):
        s.ofin_l(u)
        s.ofin(u, 0, 2)
        for pair in range(4):
            for t in range(2): s.ofin(u, pair, t)
    def owr(s, u):
        s.p.add(Op('dsw', f'ds_write_b128 v{vGw},{rr("a",RG(u)+32,4)}', [f'v{vGw}'] + regs('a', RG(u) + 32, 4), [], cost=5))
    def pacc(s, c): return QA if (c & 1) == 0 else OA
    def pp(s, n, nl):
        c, u = n >> 2, n & 3
        acc = s.pacc(c)
        fr = []
        for sl in range(4):
            f = s.alloc(); fr.append(f)
            for jj in range(2): s.rtr(f, jj, vPo + nl * 4 + sl, s.PSL[n % 4] + jj * 2048)
        for t in range(3 if nl == 0 else 2):
            d = ('v', acc + t * 16 + nl * 4)
            for sl in range(4): s.mfma(d, fr[sl], ('a', RG(u) + (t * 4 + sl) * 4), 0 if u == 0 and sl == 0 else None)
    def pfin(s, c):
        acc = s.pacc(c)
        t_ = s.stemp(); s.salu(f's_mul_i32 s{t_},s{sTC+c},144', wr=[f's{t_}'])
        pol = s.opt.get('stpol', '')
        for t in range(2):
            for pr in range(2):
                x = acc + t * 16 + pr * 8
                for i in range(4): s.cvt(x + i, x + 2 * i, x + 2 * i + 1)
                s.p.add(Op('store', f'buffer_store_dwordx4 {rr("v",x,4)},v{vSt},s[{sWS}:{sWS+3}],s{t_} offen offset:{(t*2+pr)*1024} {pol}',
                           regs('v', x, 4) + [f'v{vSt}', f's{t_}'], [], cost=5))
        x = acc + 32
        s.cvt(x, x, x + 1); s.cvt(x + 1, x + 2, x + 3)
        s.p.add(Op('store', f'buffer_store_dwordx2 {rr("v",x,2)},v{vSt+1},s[{sWS}:{sWS+3}],s{t_} offen {pol}',
                   regs('v', x, 2) + [f'v{vSt+1}', f's{t_}'], [], cost=3))
    def paddr(s):
        V = lambda x: f'v{x}'
        a, b = vW + 2, vW + 3
        def op(t, rd, wr): s.valu(t, [V(x) for x in rd], [V(x) for x in wr])
        op(f'v_subrev_u32 v{a},{PR},v{vL16}', [vL16], [a])
        op(f'v_mov_b32 v{b},s{sW}', [], [b])
        op(f'v_mul_u32_u24 v{b},4608,v{b}', [b], [b])
        op(f'v_add_u32 v{vSt},v{a},v{b}', [a, b], [vSt])
        op(f'v_lshrrev_b32 v{vSt+1},1,v{a}', [a], [vSt + 1])
        op(f'v_add3_u32 v{vSt+1},v{vSt+1},v{b},s{sTMP+9}', [vSt + 1, b], [vSt + 1])
        c, d = vW + 4, vW + 5
        op(f'v_lshrrev_b32 v{b},6,v{a}', [a], [b])
        op(f'v_bfe_u32 v{c},v{a},5,1', [a], [c])
        op(f'v_lshl_add_u32 v{c},s{sW},1,v{c}', [c], [c])
        op(f'v_and_b32 v{d},6,v{b}', [b], [d])
        op(f'v_xor_b32 v{c},v{c},v{d}', [c, d], [c])
        op(f'v_lshlrev_b32 v{c},4,v{c}', [c], [c])
        op(f'v_lshl_add_u32 v{c},v{b},7,v{c}', [b, c], [c])
        op(f'v_bfe_u32 v{d},v{a},4,1', [a], [d])
        op(f'v_lshl_add_u32 v{c},v{d},3,v{c}', [c, d], [c])
        op(f'v_add_u32 v{vPo},s{sW4K},v{c}', [c], [vPo])
        for nl in range(4):
            for sl in range(4):
                if nl or sl: op(f'v_xor_b32 v{vPo+nl*4+sl},{nl*32+sl*4096},v{vPo}', [vPo], [vPo + nl * 4 + sl])

    def build(s):
        base = [('a', aPOOL + 4 * i) for i in range(10)]
        A = lambda a, n: [('a', a + 4 * i) for i in range(n)]
        Vq = lambda a, n: [('v', a + 4 * i) for i in range(n)]
        s.pool = base + A(RG(3), 12)
        s.ld_x(0); s.ld_w(0, None); s.ld_xr(0, None); s.ld_x(1); s.ld_w(1, None); s.ld_x(2); s.ld_w(2, None); s.ld_xr(1, None); s.ld_x(3)
        for D in range(8):
            b = s.bar([f'W{D}', f'X{D}', f'xr{D>>1}'])
            s.rd_x(D)
            if 1 <= D <= 5: s.ld_w(D + 2, b)
            if D == 7: s.ld_w(8, b)
            if D <= 4: s.ld_x(D + 4)
            if D in (2, 4, 6): s.ld_xr(D // 2 + 1, b)
            if D == 1: s.ld_kv('K', 0, None)
            if D == 3: s.ld_kv('K', 1, None)
            if D == 5: s.ld_kv('V', 0, None, VS[0])
            if D == 6: s.ld_kv('K', 2, None, KS[2])
            if D == 7: s.ld_kv('V', 1, None, VS[1])
            s.tagnext = f'Q0.{D}'
            for ul in range(8):
                s.qp(D, ul)
                if D == 7 and ul == 1: s.qfin(0, 0, 2)
                if D == 7 and ul & 1:
                    for t in range(2): s.qfin(0, ul >> 1, t)
        for J in range(32):
            u, j = J >> 3, J & 7
            m = J + 8; hasq = u < 3
            if u == 0: s.pool = base + A(RG(3), 12)
            elif u == 1: s.pool = base + A(RG(3), 12)
            elif u == 2: s.pool = base + A(RG(0) + 36, 3) + A(RG(1) + 36, 3) + (A(RG(3), 6) if j < 7 else [])
            else: s.pool = base + (Vq(QA + 36, 5) if j else []) + (A(RG(0) + 36, 3) + A(RG(1) + 36, 3) if j == 0 else Vq(QA, 9) if j < 7 else [])
            tiles = [f'K{J}'] + ([f'V{J-1}'] if J else []) + ([f'W{m}', f'X{m}', f'xr{m>>1}'] if hasq else [])
            b = s.bar(tiles)
            if j == 0: s.gather(u, 0)
            if u == 3 and j in (3, 5, 7): s.gather((j - 3) // 2, 1)
            if hasq: s.rd_x(m)
            if m + 1 < 32:
                s.ld_w(m + 1, b); s.ld_x(m + 1)
                if m % 2 == 0 and m + 2 < 32: s.ld_xr(m // 2 + 1, b)
            if J == 0: s.ld_kv('V', 2, b)
            if J >= 1 and J + 2 < 32: s.ld_kv('K', J + 2, b)
            if J >= 2 and J + 1 < 32: s.ld_kv('V', J + 1, b)
            if J == 29: s.ld_wo(0, b)
            if J == 30: s.ld_wo(1, b)
            if J == 31: s.ld_wo(2, b)
            if u == 3 and j == 2: s.paddr()
            if u == 3 and j in (2, 4, 6): s.owr((j - 2) // 2)
            QP = (lambda ul: s.qp(m, ul)) if hasq else (lambda ul: None)
            def QF(ul):
                if hasq and j == 7:
                    if ul == 1: s.qfin(u + 1, 0, 2)
                    if ul == 7: s.qfin(u + 1, 2, 1)
                    if ul & 1:
                        for t in range(1 if ul == 5 else 2): s.qfin(u + 1, ul >> 1, t)
            PV = (lambda ul: s.pv(J - 1, ul)) if J else (lambda ul: None)
            s.tagnext = f'I{J}'
            if j == 0:
                if J:
                    s.rd_pr(J - 1)
                    for ul in (2, 3, 4, 5, 6, 7, 0, 1): PV(ul)
                    s.ones(J - 1)
                else:
                    for ul in range(4): QP(ul)
                s.qk(J, 0)
                if J:
                    s.ofin_all(u - 1)
                    for ul in range(4): QP(ul)
                else:
                    QP(4); QP(5)
                s.qkr(J); s.qk(J, 1)
                if J: QP(4); QP(5)
                else: QP(6)
                s.qk(J, 2)
                if J: QP(6)
                QP(7)
                s.qk(J, 3)
            elif hasq:
                s.qkr(J); s.qk(J, 0)
                for ul in range(4): QP(ul); QF(ul)
                s.qk(J, 1)
                s.rd_pr(J - 1)
                for ul in range(4, 8): QP(ul); QF(ul)
                PV(0)
                s.qk(J, 2)
                for ul in range(1, 5): PV(ul)
                s.qk(J, 3)
                for ul in range(5, 8): PV(ul)
                s.ones(J - 1)
            else:
                s.qkr(J); s.qk(J, 0)
                s.rd_pr(J - 1)
                for ul in (2, 3): PV(ul)
                s.qk(J, 1)
                for ul in (4, 5, 6): PV(ul)
                s.qk(J, 2)
                for ul in (0, 1): PV(ul)
                s.qk(J, 3)
                PV(7)
                s.ones(J - 1)
        s.pool = base + Vq(QA + 36, 5)
        b = s.bar(['V31', 'O0'])
        s.ld_wo(3, b)
        s.rd_pr(31)
        s.tagnext = 'I32'
        s.pp(0, 0); s.pp(0, 1)
        for ul in (0, 1): s.pv(31, ul)
        s.ones(31)
        for ul in range(2, 8): s.pv(31, ul)
        s.ofin_all(3)
        s.pp(0, 2); s.pp(0, 3)
        for n in range(1, 32):
            c, u = n >> 2, n & 3
            if n == 2: s.pool = base + Vq(QA + 36, 5) + Vq(SB, 13)
            b = s.bar([f'O{n}'])
            if n == 1: s.owr(3)
            if n == 2: s.gather(3, 1)
            if n + 3 < 32: s.ld_wo(n + 3, b)
            s.tagnext = f'P{n}'
            if u == 0: s.pfin(c - 1)
            for nl in range(4): s.pp(n, nl)
        s.pfin(7)
        return s.p.schedule()

MACROS = """.macro M d,a,b,c
v_mfma_f32_16x16x32_bf16 \\d,\\a,\\b,\\c
.endm
.macro T d,a,o
ds_read_b64_tr_b16 \\d,\\a offset:\\o
.endm
.macro R d,a,o
ds_read_b128 \\d,\\a offset:\\o
.endm
.macro E d
v_exp_f32_e64 \\d,\\d
.endm
.macro C d,a,b
v_cvt_pk_bf16_f32 \\d,\\a,\\b
.endm
.macro D v,r,s,o
buffer_load_dwordx4 \\v,\\r,\\s offen offset:\\o lds
.endm
.macro Dn v,r,s,o
buffer_load_dwordx4 \\v,\\r,\\s offen offset:\\o nt lds
.endm
"""

def setup_main(opt):
    L = []
    a = L.append
    a('s_cmp_ge_u32 s2,256'); a('s_cbranch_scc1 L_exit0')
    a('s_load_dwordx16 s[64:79],s[0:1],0')
    a('s_load_dwordx8 s[80:87],s[0:1],64')
    a('s_load_dwordx2 s[88:89],s[0:1],96')
    a('s_and_b32 s3,s2,7'); a('s_lshr_b32 s4,s3,2')
    a('s_and_b32 s3,s3,3'); a('s_lshl_b32 s3,s3,1'); a('s_bfe_u32 s5,s2,0x10003'); a('s_or_b32 s5,s5,s3')
    a('s_lshr_b32 s6,s2,4')
    a('v_lshrrev_b32 v1,6,v0'); a('v_and_b32 v0,63,v0'); a('s_nop 0'); a(f'v_readfirstlane_b32 s{sW},v1')
    a('v_and_b32 v2,15,v0')
    a('v_lshrrev_b32 v3,4,v0')
    a(f's_lshl_b32 s{sW4K},s{sW},12'); a(f's_lshl_b32 s{sW1K},s{sW},10'); a(f's_mov_b32 s{sTMP+9},4096')
    a('v_lshrrev_b32 v4,3,v0')
    a('v_and_b32 v5,7,v0'); a('v_and_b32 v6,6,v4'); a('v_xor_b32 v5,v5,v6'); a('v_lshlrev_b32 v5,4,v5')
    a('v_lshl_add_u32 v5,v4,10,v5')
    a(f'v_lshl_add_u32 v{vDX},v1,15,v5')
    a('v_and_b32 v6,1,v1'); a('v_lshrrev_b32 v7,1,v1')
    a('v_lshl_add_u32 v5,v6,13,v5'); a('v_lshl_add_u32 v5,v7,7,v5'); a(f'v_add_u32 v{vDXr},131072,v5')
    a('v_lshlrev_b32 v8,1,v3'); a('v_xor_b32 v8,v2,v8')
    a('v_lshlrev_b32 v9,4,v8'); a('v_lshl_add_u32 v9,v3,8,v9'); a(f'v_lshl_add_u32 v{vDK},v1,12,v9'); a(f'v_xor_b32 v{vDK+1},128,v{vDK}')
    a('v_and_b32 v9,12,v8'); a('v_bfe_u32 v10,v8,1,1'); a('v_or_b32 v9,v9,v10'); a('v_and_b32 v10,1,v8'); a('v_lshl_or_b32 v9,v10,1,v9')
    a('v_lshlrev_b32 v9,4,v9')
    a('v_lshl_add_u32 v10,v6,2,v3'); a('v_lshl_add_u32 v10,v7,5,v10')
    a(f'v_lshl_add_u32 v{vDW},v10,13,v9'); a(f'v_xor_b32 v{vDW+1},128,v{vDW}'); a(f'v_add_u32 v{vDW+1},64512,v{vDW+1}')
    a('s_waitcnt lgkmcnt(0)')
    a('s_cmp_eq_u32 s4,0')
    for d, x, y in ((sX, 64, 74), (sK, 66, 76), (sV, 68, 78), (sWq, 70, 80), (sWo, 72, 82)):
        a(f's_cselect_b32 s{d},s{x},s{y}'); a(f's_cselect_b32 s{d+1},s{x+1},s{y+1}')
    def adv(d, off): a(f's_add_u32 s{d},s{d},{off}'); a(f's_addc_u32 s{d+1},s{d+1},0')
    a('s_mul_i32 s7,s6,147456'); adv(sX, 's7')
    a('s_lshl_b32 s7,s6,3'); a('s_add_u32 s7,s7,s5'); a('s_lshl_b32 s3,s7,19'); adv(sK, 's3'); adv(sV, 's3')
    a('s_lshl_b32 s3,s5,10'); adv(sWq, 's3'); a(f's_sub_u32 s{sWq+2},4194304,s3')
    a('s_lshl_b32 s3,s5,19'); adv(sWo, 's3')
    a('s_lshl_b32 s3,s4,7'); a('s_add_u32 s7,s7,s3'); a('s_mul_i32 s7,s7,147456')
    a(f's_add_u32 s{sWS},s88,s7'); a(f's_addc_u32 s{sWS+1},s89,0')
    for d, n in ((sX, 147456), (sK, 524288), (sV, 524288), (sWo, 524288), (sWS, 147456)): a(f's_mov_b32 s{d+2},{n}')
    for d in (sX, sK, sV, sWq, sWo, sWS): a(f's_mov_b32 s{d+3},0x20000')
    a('s_and_b32 s3,s6,3'); a('s_lshl_b32 s3,s3,1')
    for D in range(8):
        a(f's_add_u32 s7,s3,{D}'); a('s_and_b32 s7,s7,7'); a(f's_lshl_b32 s{sTW+D},s7,19'); a(f's_lshl_b32 s{sTX+D},s7,7')
    a('s_mul_i32 s3,s2,0x9e3779b1'); a('s_lshr_b32 s3,s3,29')
    for D in range(8):
        a(f's_add_u32 s7,s3,{D}'); a('s_and_b32 s7,s7,7'); a(f's_lshl_b32 s{sT+D},s7,14')
    for D in range(8):
        a(f's_add_u32 s7,s{6 if opt.get("crot","b")=="b" else 5},{D+1}'); a('s_and_b32 s7,s7,7'); a(f's_lshl_b32 s{sTC+D},s7,7')
    return L

def setup_late(g):
    V = lambda x: f'v{x}'
    def op(t, rd, wr): g.valu(t, [V(x) for x in rd], [V(x) for x in wr])
    op('v_and_b32 v8,6,v2', [2], [8]); op('v_xor_b32 v8,v3,v8', [3, 8], [8]); op('v_lshlrev_b32 v8,4,v8', [8], [8])
    op('v_lshl_add_u32 v8,v2,7,v8', [2, 8], [8])
    op(f'v_add_u32 v{vXr},{XR},v8', [8], [vXr]); op(f'v_xor_b32 v{vXr+1},64,v{vXr}', [vXr], [vXr + 1])
    op('v_lshl_add_u32 v8,v1,12,v8', [1, 8], [8])
    op(f'v_add_u32 v{vX},{XWIN},v8', [8], [vX]); op(f'v_xor_b32 v{vX+1},64,v{vX}', [vX], [vX + 1])
    op('v_lshrrev_b32 v9,2,v0', [0], [9])
    op('v_bfe_u32 v10,v0,1,1', [0], [10]); op('v_lshl_add_u32 v10,v1,2,v10', [1, 10], [10])
    op('v_and_b32 v11,7,v9', [9], [11]); op('v_lshlrev_b32 v11,1,v11', [11], [11]); op('v_xor_b32 v10,v10,v11', [10, 11], [10])
    op('v_lshlrev_b32 v10,4,v10', [10], [10]); op('v_lshl_add_u32 v10,v9,8,v10', [9, 10], [10])
    op('v_and_b32 v11,1,v0', [0], [11]); op('v_lshl_add_u32 v10,v11,3,v10', [10, 11], [10])
    op(f'v_add_u32 v{vV},{VS[0]},v10', [10], [vV]); op(f'v_add_u32 v{vW},{WS_[0]},v10', [10], [vW])
    for ul in range(1, 8):
        op(f'v_xor_b32 v{vW+ul},{ul*32},v{vW}', [vW], [vW + ul]); op(f'v_xor_b32 v{vV+ul},{ul*32},v{vV}', [vV], [vV + ul])
    op('v_lshl_add_u32 v12,v1,2,v3', [1, 3], [12]); op('v_and_b32 v13,7,v2', [2], [13]); op('v_lshlrev_b32 v13,1,v13', [13], [13])
    op('v_xor_b32 v12,v12,v13', [12, 13], [12]); op('v_lshlrev_b32 v12,4,v12', [12], [12])
    op(f'v_lshl_add_u32 v{vK},v2,8,v12', [2, 12], [vK]); op(f'v_lshl_add_u32 v{vKr},v1,12,v{vK}', [1, vK], [vKr])
    for sl in range(1, 4):
        op(f'v_xor_b32 v{vK+sl},{sl*64},v{vK}', [vK], [vK + sl]); op(f'v_xor_b32 v{vKr+sl},{sl*64},v{vKr}', [vKr], [vKr + sl])
    op('v_lshlrev_b32 v14,4,v0', [0], [14]); op(f'v_add_u32 v{vL16},{PR},v14', [14], [vL16])
    op(f'v_lshl_add_u32 v15,v7,10,v{vL16}', [7, vL16], [15]); op(f'v_lshl_add_u32 v{vPw},v6,3,v15', [6, 15], [vPw])
    op('v_lshl_add_u32 v14,v1,10,v14', [1, 14], [14]); op(f'v_add_u32 v{vGw},{GB},v14', [14], [vGw])
    op('v_mov_b32 v15,0x3f803f80', [], [15])
    for i in range(4): g.awr(aONE + i, 15)

def reduce_kernel():
    L = []; a = L.append
    a('s_cmp_ge_u32 s2,256'); a('s_cbranch_scc1 L_exit1')
    a('s_load_dwordx2 s[4:5],s[0:1],80'); a('s_load_dwordx2 s[6:7],s[0:1],96')
    a('s_lshr_b32 s3,s2,3'); a('s_and_b32 s16,s2,7')
    a('v_lshrrev_b32 v1,6,v0'); a('v_and_b32 v0,63,v0')
    a('v_mul_u32_u24 v2,4608,v1'); a('v_lshl_add_u32 v3,v0,4,v2'); a('v_lshl_add_u32 v4,v0,3,v2'); a('v_add_u32 v4,4096,v4')
    a('s_mul_i32 s17,s3,1179648'); a('s_mul_i32 s18,s16,18432'); a('s_add_u32 s17,s17,s18')
    a('s_waitcnt lgkmcnt(0)')
    a('s_add_u32 s8,s6,s17'); a('s_addc_u32 s9,s7,0'); a('s_mov_b32 s10,1050624'); a('s_mov_b32 s11,0x20000')
    a('s_mov_b32 s19,0')
    for h in range(8):
        for q in range(4): a(f'buffer_load_dwordx4 v[{64+h*20+q*4}:{67+h*20+q*4}],v3,s[8:11],s19 offen offset:{q*1024}')
        a(f'buffer_load_dwordx2 v[{80+h*20}:{81+h*20}],v4,s[8:11],s19 offen')
        a('s_add_u32 s19,s19,147456')
    a('s_and_b32 s20,s3,15'); a('s_mul_i32 s20,s20,294912'); a('s_lshr_b32 s21,s3,4'); a('s_lshl_b32 s21,s21,10'); a('s_add_u32 s20,s20,s21')
    a('s_lshl_b32 s21,s16,7'); a('s_add_u32 s20,s20,s21')
    a('s_mov_b32 s12,s4'); a('s_mov_b32 s13,s5'); a('s_mov_b32 s14,4718592'); a('s_mov_b32 s15,0x20000')
    a('v_and_b32 v5,15,v0'); a('v_lshrrev_b32 v6,4,v0')
    a('v_lshl_add_u32 v7,v1,5,v5'); a('v_lshlrev_b32 v7,11,v7')
    a('v_and_b32 v8,1,v6'); a('v_xor_b32 v8,v8,v1'); a('v_lshl_add_u32 v7,v8,5,v7'); a('v_lshrrev_b32 v8,1,v6'); a('v_lshl_add_u32 v7,v8,4,v7')
    a('v_xor_b32 v9,64,v7')
    a('v_add_u32 v10,128,v5'); a('v_lshlrev_b32 v10,11,v10'); a('v_lshl_add_u32 v10,v1,5,v10'); a('v_lshl_add_u32 v10,v6,3,v10')
    for h in range(8):
        a(f's_waitcnt vmcnt({(7-h)*5})')
        for i in range(18):
            x = 64 + h * 20 + i
            if h == 0:
                a(f'v_lshlrev_b32 v{16+2*i},16,v{x}'); a(f'v_and_b32 v{17+2*i},0xffff0000,v{x}')
            else:
                a(f'v_lshlrev_b32 v11,16,v{x}'); a(f'v_and_b32 v{x},0xffff0000,v{x}')
                a(f'v_add_f32 v{16+2*i},v{16+2*i},v11'); a(f'v_add_f32 v{17+2*i},v{17+2*i},v{x}')
    for i in range(18): a(f'C v{64+i},v{16+2*i},v{17+2*i}')
    a('s_nop 1')
    for q in range(4):
        a(f'v_permlane16_swap_b32 v{64+q*4},v{66+q*4}'); a(f'v_permlane16_swap_b32 v{65+q*4},v{67+q*4}')
    a('s_add_u32 s21,s20,32768')
    for q in range(4):
        a(f'buffer_store_dwordx4 v[{64+q*4}:{67+q*4}],v{9 if q&1 else 7},s[12:15],s{21 if q>>1 else 20} offen')
    a('buffer_store_dwordx2 v[80:81],v10,s[12:15],s20 offen')
    a('L_exit1:'); a('s_endpgm')
    return L

def kd(name, vg, ao, sg=102):
    return f""".amdhsa_kernel {name}
  .amdhsa_next_free_vgpr {vg}
  .amdhsa_next_free_sgpr {sg}
  .amdhsa_accum_offset {ao}
  .amdhsa_group_segment_fixed_size 0
  .amdhsa_kernarg_size 104
  .amdhsa_user_sgpr_count 2
  .amdhsa_user_sgpr_kernarg_segment_ptr 1
  .amdhsa_system_sgpr_workgroup_id_x 1
.end_amdhsa_kernel
"""

def generate(opt):
    g = G(opt)
    setup_late(g)
    body, st = g.build()
    hdr = open('cdna_kernels/' + KN + '.s.ref').read().split('; Override launch')[0]
    s = hdr
    s += f'; @launch kernel={KN}_kernel grid=(256,1,1) block=(256,1,1) lds={LDS_BYTES}\n'
    s += f'; @launch kernel=reduce_kernel grid=(256,1,1) block=(256,1,1) lds=0\n'
    s += '.amdgcn_target "amdgcn-amd-amdhsa--gfx950"\n.text\n' + MACROS
    s += f'.globl {KN}_kernel\n.p2align 8\n.type {KN}_kernel,@function\n{KN}_kernel:\n'
    su = setup_main(opt)
    su[1] = 's_cbranch_scc0 L_go\ns_endpgm\nL_go:'
    s += '\n'.join(su) + '\n' + '\n'.join(body) + '\ns_endpgm\n'
    s += '.globl reduce_kernel\n.p2align 8\n.type reduce_kernel,@function\nreduce_kernel:\n' + '\n'.join(reduce_kernel()) + '\n'
    s += '.section .rodata,"a"\n.p2align 6\n' + kd(KN + '_kernel', 512, 256) + '.p2align 6\n' + kd('reduce_kernel', 224, 224, 32)
    return s

if __name__ == '__main__':
    opt = dict(a.split('=') for a in sys.argv[2:])
    open(sys.argv[1], 'w').write(generate(opt))
```

```python
import heapq

class Op:
    __slots__ = ('kind', 'text', 'rd', 'wr', 'crd', 'cost', 'preds', 'succs', 'idx', 'dl', 'npred', 'pos', 't',
                 'k', 'soft', 'seq', 'prio', 'tag')
    def __init__(s, kind, text, rd=(), wr=(), crd=(), cost=1, prio=None, tag=None):
        s.kind = kind; s.text = text; s.rd = tuple(rd); s.wr = tuple(wr); s.crd = tuple(crd)
        s.cost = cost; s.preds = {}; s.succs = []; s.pos = None; s.t = None; s.prio = prio; s.tag = tag
        s.seq = None

VALU = ('valu', 'trans', 'perm')
DS = ('dsr', 'dsw')
VM = ('dma', 'store', 'load')

def regs(c, a, n=1): return [f'{c}{a+i}' for i in range(n)]

class Prog:
    def __init__(s):
        s.ops = []; s.lastw = {}; s.readers = {}
        s.last_salu = None; s.last_vm = None; s.last_bar = None; s.ds_since_bar = []; s.ds_after = None
        s.DSSPACE = 0.8; s.TTMARGIN = 3.0
        s.DSLAT = 7.0; s.DMAGAP = 64; s.SAFE = 128
    def edge(s, a, b, states=0, lat=0, wait=None, dgap=0.0):
        if a is b: return
        e = b.preds.get(a)
        if e is None:
            b.preds[a] = [states, lat, wait, dgap]; a.succs.append(b)
        else:
            e[0] = max(e[0], states); e[1] = max(e[1], lat); e[2] = e[2] or wait; e[3] = max(e[3], dgap)
    def add(s, op):
        op.idx = len(s.ops)
        k = op.kind
        for r in op.rd:
            p = s.lastw.get(r)
            if p is not None: s.raw(p, op, r)
        for r in op.wr:
            p = s.lastw.get(r)
            if p is not None: s.waw(p, op, r)
            for q in s.readers.get(r, ()): s.war(q, op, r)
        for r in op.wr:
            s.lastw[r] = op; s.readers[r] = []
        for r in op.rd:
            if r not in op.wr or True: s.readers.setdefault(r, []).append(op)
        if k == 'salu':
            if s.last_salu: s.edge(s.last_salu, op, dgap=1.0)
            s.last_salu = op
        if k in VM:
            if s.last_vm: s.edge(s.last_vm, op, lat=s.DMAGAP, dgap=1.0)
            s.last_vm = op
        if k in DS:
            b = s.ds_after or s.last_bar
            if b: s.edge(b, op, dgap=0.5)
            s.ds_since_bar.append(op)
        if k == 'bar':
            for d in s.ds_since_bar: s.edge(d, op, lat=88, wait='lgkm', dgap=5.5)
            if s.last_bar: s.edge(s.last_bar, op)
            s.ds_since_bar = []; s.last_bar = op
        s.ops.append(op)
        return op
    def raw(s, p, c, r):
        pk, ck = p.kind, c.kind
        if pk == 'mfma':
            if ck == 'mfma':
                if r in c.crd and p.wr == c.crd: s.edge(p, c)
                else: s.edge(p, c, states=8)
            else: s.edge(p, c, states=8, lat=44, dgap=0)
        elif pk in VALU:
            if ck == 'mfma': s.edge(p, c, states=2, dgap=1.0)
            elif ck == 'perm': s.edge(p, c, states=2, lat=12, dgap=0.5 * p.cost + 0.5)
            elif ck == 'salu': s.edge(p, c, states=4, lat=20, dgap=1.5)
            elif ck in VALU: s.edge(p, c, states=(1 if pk == 'trans' else (2 if r[0] == 's' or r == 'vcc' else 0)), lat=4 * p.cost + 4, dgap=0.5 * p.cost)
            else: s.edge(p, c, states=(5 if r[0] == 's' else 1), lat=12, dgap=1.0)
        elif pk == 'dsr':
            s.edge(p, c, lat=96, wait='lgkm', dgap=s.DSLAT)
        elif pk in ('dma', 'load', 'store'):
            s.edge(p, c, wait='vm', dgap=2.0)
        elif pk == 'salu':
            s.edge(p, c, states=(1 if r == 'm0' else 0), dgap=0.0)
        else:
            s.edge(p, c)
    def waw(s, p, c, r):
        pk, ck = p.kind, c.kind
        if pk == 'mfma':
            if ck == 'mfma': s.edge(p, c)
            else: s.edge(p, c, states=8, lat=44)
        elif pk == 'dsr': s.edge(p, c, lat=96, wait='lgkm', dgap=s.DSLAT)
        elif pk == 'load': s.edge(p, c, wait='vm')
        elif pk in VALU and ck == 'mfma': s.edge(p, c, states=2, dgap=1.0)
        else: s.edge(p, c)
    def war(s, q, c, r):
        qk, ck = q.kind, c.kind
        if qk == 'mfma' and r in q.crd and ck != 'mfma': s.edge(q, c, states=3)
        elif qk == 'store' and r[0] in 'va': s.edge(q, c, states=2, dgap=0.5)
        elif qk == 'dsr' and r[0] == '$': s.edge(q, c, lat=96, wait='lgkm', dgap=s.DSLAT)
        else: s.edge(q, c, dgap=(0.5 if ck == 'mfma' else 0.0))

    def schedule(s, vm_before=0, verbose=True, stamp=None):
        ops = s.ops
        k = 0
        for o in ops:
            if o.kind == 'mfma': o.k = k; k += 1
            else: o.k = k
        nm = k
        cap = {}
        for it in range(3):
            for o in reversed(ops):
                if o.kind == 'mfma': o.dl = float(o.k)
                else:
                    d = None
                    for c in o.succs:
                        x = c.dl - c.preds[o][3]
                        if d is None or x < d: d = x
                    if d is None: d = o.k + 24.0
                    if o.prio is not None: d = min(d, o.k + o.prio)
                    if o in cap: d = min(d, cap[o])
                    o.dl = d
            if it == 2 or not s.DSSPACE: break
            nx = 1e18
            for o in sorted((o for o in ops if o.kind in DS), key=lambda o: (-o.dl, -o.idx)):
                nx = min(o.dl, nx - s.DSSPACE); cap[o] = nx
        for o in ops: o.npred = len(o.preds); o.soft = 0
        ready = []
        out = []
        st = dict(pos=0, t=0, ds=0, vm=vm_before, dscov=0, vmcov=0, nops=0, extra=0, waits=0, stall=0, nstamp=0)
        dst = []
        def release(o):
            for c in o.succs:
                e = c.preds[o]
                c.soft = max(c.soft, o.t + e[1])
                c.npred -= 1
                if c.npred == 0 and c.kind != 'mfma': ready.append(c)
        def hard_gap(o, pos):
            n = 0
            for p, e in o.preds.items():
                if e[0]: n = max(n, e[0] - (pos - p.pos - 1))
            return n
        def need_wait(o):
            lg = vm = None
            for p, e in o.preds.items():
                if p.pos is None: continue
                if e[2] == 'lgkm' and p.seq > st['dscov']: lg = max(lg or 0, p.seq)
                if e[2] == 'vm' and p.seq > st['vmcov']: vm = max(vm or 0, p.seq)
            return lg, vm
        def emit_raw(text, cost):
            out.append(text); st['pos'] += 1; st['t'] += cost
        def emit_wait(lg, vm, cost):
            parts = []
            if vm is not None:
                n = min(st['vm'] - vm, 63); parts.append(f'vmcnt({n})'); st['vmcov'] = st['vm'] - n
            if lg is not None:
                while lg < st['ds'] and dst[lg] + s.SAFE <= st['t']: lg += 1
                n = min(st['ds'] - lg, 15); parts.append(f'lgkmcnt({n})'); st['dscov'] = st['ds'] - n
            emit_raw('s_waitcnt ' + ' '.join(parts), cost); st['waits'] += 1
        def emit(o, cost):
            lg, vm = need_wait(o)
            if o.kind == 'bar' and o.tag: out.append('@' + o.tag)
            if o.kind == 'bar' and stamp is not None:
                emit_raw('s_memtime s[62:63]', 4); lg = st['ds']
            if lg is not None or vm is not None:
                emit_wait(lg, vm, 4)
            if o.soft > st['t'] and (o.kind in ('mfma', 'bar') or lg is not None):
                st['stall'] += o.soft - st['t']; st['t'] = o.soft
            n = hard_gap(o, st['pos'])
            if n > 0:
                out.append(f's_nop {n-1}'); st['pos'] += n; st['t'] += 4 * n; st['nops'] += n
            o.pos = st['pos']; o.t = st['t']
            if o.kind in DS: st['ds'] += 1; o.seq = st['ds']; dst.append(st['t'])
            if o.kind in VM: st['vm'] += 1; o.seq = st['vm']
            emit_raw(o.text, cost)
            if o.kind == 'bar' and stamp is not None:
                n = st['nstamp']; st['nstamp'] += 1
                for j, r in enumerate((60, 62, 90)): emit_raw(f'v_writelane_b32 v{stamp+2*j+(n>>6)},s{r},{n&63}', 4)
                emit_raw('s_memtime s[60:61]', 4); emit_raw('s_memrealtime s[90:91]', 4)
            release(o)
        for o in ops:
            if o.npred == 0 and o.kind != 'mfma': ready.append(o)
        mf = [o for o in ops if o.kind == 'mfma']
        order = {'dsr': 0, 'dsw': 1, 'dma': 2, 'load': 2, 'store': 3, 'valu': 4, 'trans': 4, 'perm': 4}
        def forced(target):
            while (target.npred > 0 if target is not None else ready):
                assert ready, 'deadlock'
                lim = (target.k + 0.01) if target is not None else 1e18
                cand = [o for o in ready]
                t = st['t']; pos = st['pos']
                good = [o for o in cand if o.soft <= t + 2 and hard_gap(o, pos) == 0]
                if good: o = min(good, key=lambda o: (o.dl, o.idx))
                else:
                    urg = [o for o in cand if o.dl <= lim] or cand
                    o = min(urg, key=lambda o: (max(o.soft - t, 4 * hard_gap(o, pos)), o.dl))
                ready.remove(o)
                c = 20 if o.kind == 'bar' else 4 * o.cost
                emit(o, c); st['extra'] += c
        marks = []
        for i, m in enumerate(mf):
            forced(m)
            if i and st['t'] < mf[i-1].t + 16: st['t'] = mf[i-1].t + 16
            emit(m, 4)
            if m.tag: marks.append((m.tag, st['t'], i))
            t0 = m.t; nxt = mf[i+1] if i + 1 < nm else None
            scal = None
            bars = [o for o in ready if o.kind == 'bar' and (o.soft <= t0 + 6 or o.dl <= i)]
            if bars:
                b = bars[0]; ready.remove(b)
                emit(b, 16); st['extra'] += 16
                scal = True
            tv = max(st['t'], t0 + 8)
            pick = []; slots = 0
            cand = [o for o in ready if o.kind not in ('salu', 'bar') and o.soft <= tv + 2 and hard_gap(o, st['pos']) == 0]
            cand.sort(key=lambda o: ((-1e9 if o.kind in ('dma', 'load') else o.dl), o.idx))
            if cand:
                first = cand[0]
                ones = [o for o in cand if o.cost == 1]
                twos = [o for o in cand if o.cost >= 2]
                if first.cost >= 2: pick = [first]
                elif len(ones) >= 2:
                    sec = [o for o in ones[1:] if not (o.kind in DS and first.kind in DS and o.dl > i + s.TTMARGIN)]
                    if sec: pick = [first, sec[0]]
                    elif twos and first.dl > i + s.TTMARGIN: pick = [twos[0]]
                    else: pick = [first]
                elif twos and first.dl > i + 2 and first.kind not in ('dma', 'load'): pick = [twos[0]]
                else: pick = [first]
                for o in cand:
                    if o not in pick and o.dl <= i + 0.25 and o.kind not in VM: pick.append(o)
            pick.sort(key=lambda o: (order[o.kind], o.dl, o.idx))
            lg = vm = None
            for o in pick + ([nxt] if nxt is not None else []):
                a, b2 = need_wait(o)
                if o is nxt and nxt.soft > t0 + 16 + 12 and False: continue
                if a is not None: lg = max(lg or 0, a)
                if b2 is not None: vm = max(vm or 0, b2)
            if lg is not None or vm is not None:
                emit_wait(lg, vm, 4)
                if scal: st['extra'] += 4
                scal = True
            sal = [o for o in ready if o.kind == 'salu' and hard_gap(o, st['pos']) == 0]
            if sal and (not scal or sum(o.cost for o in pick) < 2 or sal[0].dl <= i):
                o = sal[0]; ready.remove(o); emit(o, 4)
            if st['t'] < t0 + 8: st['t'] = t0 + 8
            for o in pick:
                ready.remove(o); emit(o, 4 * o.cost)
            if st['t'] > t0 + 16: st['extra'] += 0
        forced(None)
        assert all(o.pos is not None for o in ops)
        if verbose:
            print(f"; sched: mfma={nm} instrs={st['pos']} est_cycles={st['t']} ideal={16*nm} nops={st['nops']} waits={st['waits']} stall={st['stall']}")
            prev = None
            for tag, t, i in marks:
                if prev: print(f";   {prev[0]}: {t-prev[1]} cyc, {i-prev[2]} mfma")
                prev = (tag, t, i)
        return out, st
```

```python
import sys, struct, math
from sched import *

KN = 'concat_heads__mha_block_cached__gqa_block_cached__near_ridge'
def f2u(x): return struct.unpack('<I', struct.pack('<f', x))[0]
CSCALE = f2u(math.log2(math.e) / math.sqrt(128.0))

KS = [0, 16384, 32768]; XB = 49152
VS = [65536, 81920, 98304]
XR = 114688; PR = XR + 8192; GB = XR + 12288
WS_ = [131072, 147456]
LDS_BYTES = 163840
XWIN = 32768
OA = 0; QA = 72; SB = 144; SR = 160; PB = 164; MB = 196; PRW = 208
vK = 210; vKr = 214; vV = 218; vW = 226; vX = 234; vXr = 236; vPw = 238; vL16 = 239; vGw = 240
vDK = 241; vDW = 243; vDX = 245; vDXr = 246; TMP = 247
vPo = QA + 56
vPo2 = vK
vSt = vW
def RG(u): return 48 * u
aONE = 192; aPR = 196; aL = 204; aPOOL = 216
sK = 8; sV = 12; sWq = 16; sX = 20; sWo = 24; sWS = 28; sOUT = 32
sT = 64; sW = 44; sW4K = 45; sW1K = 46; sTW = 36; sTX = 92; sTC = 72
sTMP = 50; sFLAG = 47; sCS = 58

def rr(c, a, n): return f'{c}[{a}:{a+n-1}]' if n > 1 else f'{c}{a}'

class G:
    def __init__(s, opt):
        s.p = Prog(); s.opt = opt
        s.pool = []; s.lastuse = {}; s.tick = 0; s.stmp = 0; s.tagnext = None
    def mfma(s, d, a, b, c=None):
        D = regs(d[0], d[1], 4)
        if c == 0: ct = '0'; C = []
        else:
            c = c or d; ct = rr(c[0], c[1], 4); C = regs(c[0], c[1], 4)
        o = Op('mfma', f'M {rr(d[0],d[1],4)},{rr(a[0],a[1],4)},{rr(b[0],b[1],4)},{ct}',
               rd=regs(a[0], a[1], 4) + regs(b[0], b[1], 4) + C, wr=D, crd=C, tag=s.tagnext)
        s.tagnext = None
        return s.p.add(o)
    def valu(s, text, rd, wr, kind='valu', cost=1, prio=None): return s.p.add(Op(kind, text, rd, wr, cost=cost, prio=prio))
    def salu(s, text, rd=(), wr=()): return s.p.add(Op('salu', text, rd, wr))
    def exp(s, v): return s.valu(f'E v{v}', [f'v{v}'], [f'v{v}'], 'trans', 2)
    def cvt(s, d, a, b): return s.valu(f'C v{d},v{a},v{b}', [f'v{a}', f'v{b}'], [f'v{d}'])
    def swap(s, n, a, b): return s.valu(f'v_permlane{n}_swap_b32 v{a},v{b}', [f'v{a}', f'v{b}'], [f'v{a}', f'v{b}'], 'perm', 2)
    def awr(s, a, v): return s.valu(f'v_accvgpr_write_b32 a{a},v{v}', [f'v{v}'], [f'a{a}'])
    def r128(s, d, addr, off, extra=()):
        assert 0 <= off < 65536, off
        return s.p.add(Op('dsr', f'R {rr(d[0],d[1],4)},v{addr},{off}', [f'v{addr}'] + list(extra), regs(d[0], d[1], 4)))
    def rtr(s, d, half, addr, off):
        assert 0 <= off < 65536, off
        return s.p.add(Op('dsr', f'T {rr(d[0],d[1]+2*half,2)},v{addr},{off}', [f'v{addr}'], regs(d[0], d[1] + 2 * half, 2)))
    def alloc(s):
        q = min(s.pool, key=lambda x: s.lastuse.get(x, -1))
        s.tick += 1; s.lastuse[q] = s.tick
        return q
    def stemp(s):
        s.stmp = (s.stmp + 1) % 8
        return sTMP + s.stmp
    def bar(s, tiles, tag=None):
        rd = []
        for t in tiles: rd += [f'#{t}:{p}' for p in range(1 if t.startswith('xr') else 4)]
        for r in rd: assert r in s.p.lastw, r
        return s.p.add(Op('bar', 's_barrier', rd, [], tag=tag))
    def dma(s, name, p, voff, srd, soff, off, pol, after, priv=None):
        wr = [f'#{name}:{p}'] + ([f'${priv}:{p}'] if priv is not None else [])
        o = Op('dma', f'{"Dn" if pol else "D"} v{voff},s[{srd}:{srd+3}],s{soff},{off}', [f'v{voff}', f's{soff}', 'm0'], wr)
        s.p.add(o)
        if after is not None: s.p.edge(after, o)
        return o
    def ld_kv(s, which, n, after, priv=None):
        u, j = n >> 3, n & 7
        slot = (KS if which == 'K' else VS)[n % 3]
        s.salu(f's_add_u32 m0,s{sW4K},{slot}', wr=['m0'])
        t = s.stemp(); s.salu(f's_add_u32 s{t},s{sT+j},{u*131072}', wr=[f's{t}'])
        for p in range(4): s.dma(f'{which}{n}', p, vDK + (p & 1), sK if which == 'K' else sV, t, 1024 * p, 1, after, priv)
    def wslot(s, m): return [WS_[0], WS_[1], VS[2]][m % 3] if m < 9 else WS_[(m + 1) % 2]
    def xslot(s, m): return [XB, VS[0], KS[2], VS[1]][m % 4] if m < 8 else XB
    def ld_w(s, m, after):
        u, D = m >> 3, m & 7
        s.salu(f's_add_u32 m0,s{sW4K},{s.wslot(m)}', wr=['m0'])
        for h in range(2):
            t = s.stemp(); s.salu(f's_add_u32 s{t},s{sTW+D},{u*256+h*129024}', wr=[f's{t}'])
            for p in (2 * h, 2 * h + 1): s.dma(f'W{m}', p, vDW + (p & 1), sWq, t, 1024 * p, 0, after)
    def ld_x(s, m):
        D = m & 7; loc = s.xslot(m)
        s.salu(f's_add_u32 m0,s{sW4K},{loc}', wr=['m0'])
        for p in range(4):
            if p: t = s.stemp(); s.salu(f's_add_u32 s{t},s{sTX+D},{7168*p}', wr=[f's{t}'])
            else: t = sTX + D
            s.dma(f'X{m}', p, vDX, sX, t, 1024 * p, 0, None, loc)
    def ld_xr(s, m2, after):
        s.salu(f's_add_u32 m0,s{sW1K},{XR+(m2&1)*4096}', wr=['m0'])
        s.dma(f'xr{m2}', 0, vDXr, sX, sTX + ((2 * m2) & 7), 0, 0, after)
    PSL = [XB, KS[2], KS[0], KS[1], WS_[0], WS_[1], VS[2]]
    def ld_wo(s, n, after):
        c, u = n >> 2, n & 3
        s.salu(f's_add_u32 m0,s{sW4K},{s.PSL[n%7]}', wr=['m0'])
        for p in range(4):
            t = s.stemp(); s.salu(f's_add_u32 s{t},s{sTC+c},{u*131072+7168*p}', wr=[f's{t}'])
            s.dma(f'O{n}', p, vDX, sWo, t, 1024 * p, 0, after, XB if n == 0 else None)
    def xfrag(s, m): return (RG(2) + 24 * (m & 1)) if m < 8 else RG(m >> 3) + 24
    def rd_x(s, m):
        xf = s.xfrag(m); loc = s.xslot(m)
        for sg in range(2):
            for t in range(2):
                s.r128(('a', xf + (t * 2 + sg) * 4), vX + sg, loc - XWIN + t * 2048, [f'${loc}:{2*t}', f'${loc}:{2*t+1}'])
        for sg in range(2):
            s.r128(('a', xf + 16 + sg * 4), vXr + sg, ((m >> 1) & 1) * 4096 + (m & 1) * 2048)
    def qp(s, m, ul):
        acc = OA if m < 8 else QA
        xf = s.xfrag(m); slot = s.wslot(m)
        areg, base = (vW, WS_[0]) if slot >= WS_[0] else (vV, VS[0])
        fr = []
        for sg in range(2):
            f = s.alloc(); fr.append(f)
            for jj in range(2): s.rtr(f, jj, areg + ul, slot - base + (2 * sg + jj) * 4096)
        for t in range(3 if ul < 2 else 2):
            d = ('v', acc + t * 32 + ul * 4)
            for sg in range(2): s.mfma(d, fr[sg], ('a', xf + (t * 2 + sg) * 4), 0 if (m & 7) == 0 and sg == 0 else None)
    def qfin(s, u, pair, t):
        acc = (OA if u == 0 else QA) + t * 32 + pair * 8
        for i in range(8): s.valu(f'v_mul_f32 v{acc+i},s{sCS},v{acc+i}', [f'v{acc+i}'], [f'v{acc+i}'])
        for i in range(4): s.cvt(acc + i, acc + 2 * i, acc + 2 * i + 1)
        s.swap(16, acc, acc + 2); s.swap(16, acc + 1, acc + 3)
        if t < 2:
            for i in range(4): s.awr(RG(u) + (t * 4 + pair) * 4 + i, acc + i)
        else:
            s.p.add(Op('dsw', f'ds_write_b128 v{vGw},{rr("v",acc,4)}', [f'v{vGw}'] + regs('v', acc, 4), [], cost=5))
    def gather(s, u, first):
        for sl in range(first, 4):
            if sl:
                s.valu(f'v_xor_b32 v{TMP+5+sl},{sl*1024},v{vGw}', [f'v{vGw}'], [f'v{TMP+5+sl}'])
            s.r128(('a', RG(u) + 32 + 4 * sl), TMP + 5 + sl if sl else vGw, 0)
    def rowmax(s, src, t):
        a, b = MB + 4 * t, MB + 4 * t + 1
        V = lambda x: f'v{x}'
        s.valu(f'v_max3_f32 v{a},v{src},v{src+1},v{src+2}', regs('v', src, 3), [V(a)])
        s.valu(f'v_max_f32 v{a},v{a},v{src+3}', [V(a), V(src + 3)], [V(a)])
        for n in (16, 32):
            s.valu(f'v_mov_b32 v{b},v{a}', [V(a)], [V(b)])
            s.swap(n, a, b)
            if n == 16: s.valu(f'v_max_f32 v{a},v{a},v{b}', [V(a), V(b)], [V(a)])
            else: s.valu(f'v_min_f32_e64 v{a},-v{a},-v{b}', [V(a), V(b)], [V(a)])
        for i in range(1, 4): s.valu(f'v_mov_b32 v{a+i},v{a}', [V(a)], [V(a + i)])
    def qk(s, n, kt):
        u = n >> 3; init = (n & 7) == 0 and kt == 0
        fr = [s.alloc() for _ in range(4)]
        for sl in range(4): s.r128(fr[sl], vK + sl, KS[n % 3] + kt * 4096)
        sb = SB + (kt & 1) * 8
        for t in range(3 if init else 2):
            d = ('v', sb + 4 * t if t < 2 else SR)
            for sl in range(4):
                s.mfma(d, fr[sl], ('a', RG(u) + (t * 4 + sl) * 4), None if sl else (0 if init else ('v', MB + 4 * t)))
        if init:
            for t in range(3): s.rowmax(sb + 4 * t if t < 2 else SR, t)
            for t in range(2):
                for i in range(4):
                    x = sb + 4 * t + i
                    s.valu(f'v_add_f32 v{x},v{x},v{MB+4*t}', [f'v{x}', f'v{MB+4*t}'], [f'v{x}'])
        for t in range(2):
            x = sb + 4 * t
            for i in range(4): s.exp(x + i)
            d = PB + (n & 1) * 16 + ((kt >> 1) * 2 + t) * 4 + (kt & 1) * 2
            s.cvt(d, x, x + 1); s.cvt(d + 1, x + 2, x + 3)
    def qkr(s, n):
        u = n >> 3
        fr = [s.alloc() for _ in range(4)]
        for sl in range(4): s.r128(fr[sl], vKr + sl, KS[n % 3])
        for sl in range(4): s.mfma(('v', SR), fr[sl], ('a', RG(u) + 32 + sl * 4), None if sl else ('v', MB + 8))
        for i in range(4): s.exp(SR + i)
        s.cvt(PRW, SR, SR + 1); s.cvt(PRW + 1, SR + 2, SR + 3)
        s.p.add(Op('dsw', f'ds_write_b64 v{vPw},v[{PRW}:{PRW+1}] offset:{(n&1)*2048}', [f'v{vPw}'] + regs('v', PRW, 2), [], cost=3))
    def rd_pr(s, n):
        for sg in range(2): s.r128(('a', aPR + 4 * sg), vL16, (n & 1) * 2048 + sg * 1024)
    def pfrag(s, n, sg, t): return ('v', PB + (n & 1) * 16 + (sg * 2 + t) * 4) if t < 2 else ('a', aPR + 4 * sg)
    def pv(s, n, ul):
        fr = []
        for sg in range(2):
            f = s.alloc(); fr.append(f)
            for jj in range(2): s.rtr(f, jj, vV + ul, VS[n % 3] - VS[0] + (2 * sg + jj) * 4096)
        for t in range(3 if ul < 2 else 2):
            for sg in range(2): s.mfma(('v', OA + t * 32 + ul * 4), fr[sg], s.pfrag(n, sg, t), 0 if (n & 7) == 0 and sg == 0 else None)
    def ones(s, n, ts=(2, 0, 1)):
        for t in ts:
            for sg in range(2): s.mfma(('a', aL + 4 * t), ('a', aONE), s.pfrag(n, sg, t), 0 if (n & 7) == 0 and sg == 0 else None)
    def ofin_l(s, u):
        for t in range(3):
            x = TMP + 6 + t
            s.valu(f'v_accvgpr_read_b32 v{x},a{aL+4*t}', [f'a{aL+4*t}'], [f'v{x}'])
            s.valu(f'v_rcp_f32 v{x},v{x}', [f'v{x}'], [f'v{x}'], 'trans', 2)
    def ofin(s, u, pair, t):
        acc = OA + t * 32 + pair * 8; x = TMP + 6 + t
        for i in range(8): s.valu(f'v_mul_f32 v{acc+i},v{x},v{acc+i}', [f'v{acc+i}', f'v{x}'], [f'v{acc+i}'])
        for i in range(4): s.cvt(acc + i, acc + 2 * i, acc + 2 * i + 1)
        for i in range(4): s.awr(RG(u) + (t * 4 + pair) * 4 + i, acc + i)
    def ofin_all(s, u):
        s.ofin_l(u)
        s.ofin(u, 0, 2)
        for pair in range(4):
            for t in range(2): s.ofin(u, pair, t)
    def owr(s, u):
        s.p.add(Op('dsw', f'ds_write_b128 v{vGw},{rr("a",RG(u)+32,4)}', [f'v{vGw}'] + regs('a', RG(u) + 32, 4), [], cost=5))
    def pacc(s, c): return QA if (c & 1) == 0 else OA
    def pp(s, n, nl):
        c, u = n >> 2, n & 3
        acc = s.pacc(c)
        fr = []
        for sl in range(4):
            f = s.alloc(); fr.append(f)
            slot = s.PSL[n % 7]; ar, bs = (vPo, 0) if slot < 65536 else (vPo2, VS[2])
            for jj in range(2): s.rtr(f, jj, ar + nl * 4 + sl, slot - bs + jj * 2048)
        for t in range(3 if nl == 0 else 2):
            d = ('v', acc + t * 16 + nl * 4)
            for sl in range(4): s.mfma(d, fr[sl], ('a', RG(u) + (t * 4 + sl) * 4), 0 if u == 0 and sl == 0 else None)
    def pfin(s, c):
        acc = s.pacc(c)
        t_ = s.stemp(); s.salu(f's_mul_i32 s{t_},s{sTC+c},144', wr=[f's{t_}'])
        pol = s.opt.get('stpol', '')
        for t in range(2):
            for pr in range(2):
                x = acc + t * 16 + pr * 8
                for i in range(4): s.cvt(x + i, x + 2 * i, x + 2 * i + 1)
                s.p.add(Op('store', f'buffer_store_dwordx4 {rr("v",x,4)},v{vSt},s[{sWS}:{sWS+3}],s{t_} offen offset:{(t*2+pr)*1024} {pol}',
                           regs('v', x, 4) + [f'v{vSt}', f's{t_}'], [], cost=5))
        x = acc + 32
        s.cvt(x, x, x + 1); s.cvt(x + 1, x + 2, x + 3)
        s.p.add(Op('store', f'buffer_store_dwordx2 {rr("v",x,2)},v{vSt+1},s[{sWS}:{sWS+3}],s{t_} offen {pol}',
                   regs('v', x, 2) + [f'v{vSt+1}', f's{t_}'], [], cost=3))
    def paddr(s):
        V = lambda x: f'v{x}'
        a, b = vW + 2, vW + 3
        def op(t, rd, wr): s.valu(t, [V(x) for x in rd], [V(x) for x in wr])
        op(f'v_subrev_u32 v{a},{PR},v{vL16}', [vL16], [a])
        op(f'v_mov_b32 v{b},s{sW}', [], [b])
        op(f'v_mul_u32_u24 v{b},4608,v{b}', [b], [b])
        op(f'v_add_u32 v{vSt},v{a},v{b}', [a, b], [vSt])
        op(f'v_lshrrev_b32 v{vSt+1},1,v{a}', [a], [vSt + 1])
        op(f'v_add3_u32 v{vSt+1},v{vSt+1},v{b},s{sTMP+9}', [vSt + 1, b], [vSt + 1])
        c, d = vW + 4, vW + 5
        op(f'v_lshrrev_b32 v{b},6,v{a}', [a], [b])
        op(f'v_bfe_u32 v{c},v{a},5,1', [a], [c])
        op(f'v_lshl_add_u32 v{c},s{sW},1,v{c}', [c], [c])
        op(f'v_and_b32 v{d},6,v{b}', [b], [d])
        op(f'v_xor_b32 v{c},v{c},v{d}', [c, d], [c])
        op(f'v_lshlrev_b32 v{c},4,v{c}', [c], [c])
        op(f'v_lshl_add_u32 v{c},v{b},7,v{c}', [b, c], [c])
        op(f'v_bfe_u32 v{d},v{a},4,1', [a], [d])
        op(f'v_lshl_add_u32 v{c},v{d},3,v{c}', [c, d], [c])
        op(f'v_add_u32 v{vPo},s{sW4K},v{c}', [c], [vPo])
        for nl in range(4):
            for sl in range(4):
                if nl or sl: op(f'v_xor_b32 v{vPo+nl*4+sl},{nl*32+sl*4096},v{vPo}', [vPo], [vPo + nl * 4 + sl])

    def build(s):
        base = [('a', aPOOL + 4 * i) for i in range(10)]
        A = lambda a, n: [('a', a + 4 * i) for i in range(n)]
        Vq = lambda a, n: [('v', a + 4 * i) for i in range(n)]
        s.pool = base + A(RG(3), 12)
        s.ld_x(0); s.ld_w(0, None); s.ld_xr(0, None); s.ld_x(1); s.ld_w(1, None); s.ld_x(2)
        nb = int(s.opt.get('nb', 2))
        if nb == 0: last0 = s.p.last_vm
        s.ld_w(2, None); s.ld_xr(1, None)
        if nb == 1: last0 = s.p.last_vm
        s.ld_x(3)
        if nb == 2: last0 = s.p.last_vm
        for D in range(8):
            b = s.bar([f'W{D}', f'X{D}', f'xr{D>>1}'], 'touch0' if D == 0 else None)
            if D == 0: s.p.edge(last0, b)
            s.rd_x(D)
            if D in (2, 4, 6): s.ld_xr(D // 2 + 1, b)
            if D >= 1: s.ld_w(D + 2, b)
            if D <= 4: s.ld_x(D + 4)
            if D == 4:
                s.salu('s_mul_i32 s3,s2,0x9e3779b1', wr=['s3']); s.salu('s_lshr_b32 s3,s3,29', wr=['s3'])
                for k in range(8):
                    s.salu(f's_add_u32 s7,s3,{k}'); s.salu('s_and_b32 s7,s7,7'); s.salu(f's_lshl_b32 s{sT+k},s7,14')
            if D == 5: s.ld_kv('K', 0, None)
            if D == 6: s.ld_kv('K', 1, None); s.ld_kv('V', 0, None, VS[0])
            if D == 7: s.ld_kv('K', 2, None, KS[2]); s.ld_kv('V', 1, None, VS[1])
            s.tagnext = f'Q0.{D}'
            for ul in range(8):
                s.qp(D, ul)
                if D == 7 and ul == 1: s.qfin(0, 0, 2)
                if D == 7 and ul & 1:
                    for t in range(2): s.qfin(0, ul >> 1, t)
        for J in range(32):
            u, j = J >> 3, J & 7
            m = J + 8; hasq = u < 3
            if u == 0: s.pool = base + A(RG(3), 12)
            elif u == 1: s.pool = base + A(RG(3), 12)
            elif u == 2: s.pool = base + A(RG(0) + 36, 3) + A(RG(1) + 36, 3) + (A(RG(3), 6) if j < 7 else [])
            else: s.pool = base + (Vq(QA + 36, 5) if j else []) + (A(RG(0) + 36, 3) + A(RG(1) + 36, 3) if j == 0 else Vq(QA, 9) if j < 7 else [])
            tiles = [f'K{J}'] + ([f'V{J-1}'] if J else []) + ([f'W{m}', f'X{m}', f'xr{m>>1}'] if hasq else [])
            b = s.bar(tiles, f'touchJ{J}')
            if j == 0: s.gather(u, 0)
            if u == 3 and j in (3, 5, 7): s.gather((j - 3) // 2, 1)
            if hasq: s.rd_x(m)
            if m + 1 < 32:
                if J: s.ld_w(m + 1, b)
                s.ld_x(m + 1)
                if m % 2 == 0 and m + 2 < 32: s.ld_xr(m // 2 + 1, b)
            if J >= 1 and J + 2 < 32: s.ld_kv('K', J + 2, b)
            if J >= 1 and J + 1 < 32: s.ld_kv('V', J + 1, b)
            if J == 26:
                for k in range(8):
                    s.salu(f's_add_u32 s7,s{6 if s.opt.get("crot","b")=="b" else 5},{k+1}'); s.salu('s_and_b32 s7,s7,7'); s.salu(f's_lshl_b32 s{sTC+k},s7,7')
            for n in {27: [0], 28: [4], 29: [5], 30: [1], 31: [2, 6]}.get(J, []): s.ld_wo(n, b)
            if u == 3 and j == 2: s.paddr()
            if u == 3 and j in (2, 4, 6): s.owr((j - 2) // 2)
            QP = (lambda ul: s.qp(m, ul)) if hasq else (lambda ul: None)
            def QF(ul):
                if hasq and j == 7:
                    if ul == 1: s.qfin(u + 1, 0, 2)
                    if ul == 7: s.qfin(u + 1, 2, 1)
                    if ul & 1:
                        for t in range(1 if ul == 5 else 2): s.qfin(u + 1, ul >> 1, t)
            PV = (lambda ul: s.pv(J - 1, ul)) if J else (lambda ul: None)
            s.tagnext = f'I{J}'
            if j == 0:
                if J:
                    s.rd_pr(J - 1)
                    for ul in (2, 3, 4, 5, 6, 7, 0, 1): PV(ul)
                    s.ones(J - 1)
                else:
                    for ul in range(4): QP(ul)
                s.qk(J, 0)
                if J:
                    s.ofin_all(u - 1)
                    for ul in range(4): QP(ul)
                else:
                    QP(4); QP(5)
                s.qkr(J); s.qk(J, 1)
                if J: QP(4); QP(5)
                else: QP(6)
                s.qk(J, 2)
                if J: QP(6)
                QP(7)
                s.qk(J, 3)
            elif hasq:
                s.qkr(J); s.qk(J, 0)
                for ul in range(4): QP(ul); QF(ul)
                s.qk(J, 1)
                s.rd_pr(J - 1)
                for ul in range(4, 8): QP(ul); QF(ul)
                PV(0)
                s.qk(J, 2)
                for ul in range(1, 5): PV(ul)
                s.qk(J, 3)
                for ul in range(5, 8): PV(ul)
                s.ones(J - 1)
            else:
                s.qkr(J); s.qk(J, 0)
                s.rd_pr(J - 1)
                for ul in (2, 3): PV(ul)
                s.qk(J, 1)
                for ul in (4, 5, 6): PV(ul)
                s.qk(J, 2)
                for ul in (0, 1): PV(ul)
                s.qk(J, 3)
                PV(7)
                s.ones(J - 1)
        s.pool = base + Vq(QA + 36, 5)
        b = s.bar(['V31', 'O0', 'O1'])
        s.ld_wo(3, b)
        s.rd_pr(31)
        s.tagnext = 'I32'
        s.pp(0, 0); s.pp(0, 1)
        for ul in (0, 1): s.pv(31, ul)
        s.ones(31)
        for ul in range(2, 8): s.pv(31, ul)
        s.ofin_all(3)
        s.pp(0, 2); s.pp(0, 3)
        for n in range(1, 32):
            c, u = n >> 2, n & 3
            if n == 2: s.pool = base + Vq(QA + 36, 5) + Vq(SB, 13)
            prev = b
            if n < 31: b = s.bar([f'O{n+1}'])
            s.p.ds_after = None
            if n == 1:
                s.owr(3)
                for k in range(16): s.valu(f'v_add_u32 v{vPo2+k},{VS[2]},v{vPo+k}', [f'v{vPo+k}'], [f'v{vPo2+k}'])
            if n == 2: s.gather(3, 1)
            s.p.ds_after = prev
            if n + 6 < 32: s.ld_wo(n + 6, b)
            s.tagnext = f'P{n}'
            if u == 0: s.pfin(c - 1)
            for nl in ((1, 2, 3, 0) if n == 3 else range(4)): s.pp(n, nl)
        s.pfin(7)
        for k in ('DSSPACE', 'TTMARGIN', 'SAFE'):
            if k in s.opt: setattr(s.p, k, float(s.opt[k]))
        return s.p.schedule(stamp=(TMP if s.opt.get('stamp') else None))

MACROS = """.macro M d,a,b,c
v_mfma_f32_16x16x32_bf16 \\d,\\a,\\b,\\c
.endm
.macro T d,a,o
ds_read_b64_tr_b16 \\d,\\a offset:\\o
.endm
.macro R d,a,o
ds_read_b128 \\d,\\a offset:\\o
.endm
.macro E d
v_exp_f32_e64 \\d,\\d
.endm
.macro C d,a,b
v_cvt_pk_bf16_f32 \\d,\\a,\\b
.endm
.macro D v,r,s,o
buffer_load_dwordx4 \\v,\\r,\\s offen offset:\\o lds
.endm
.macro Dn v,r,s,o
buffer_load_dwordx4 \\v,\\r,\\s offen offset:\\o nt lds
.endm
"""

def setup_entry(opt):
    L = []; a = L.append
    a('s_cmp_ge_u32 s2,256'); a('s_cbranch_scc0 L_go'); a('s_endpgm'); a('L_go:')
    if opt.get('stamp'): a('s_memtime s[60:61]'); a('s_memrealtime s[90:91]')
    a('s_load_dwordx16 s[64:79],s[0:1],0')
    a('s_load_dwordx8 s[80:87],s[0:1],64')
    a('s_load_dwordx2 s[88:89],s[0:1],96')
    a('s_getpc_b64 s[48:49]'); a('s_bfe_u32 s3,s2,0x20003'); a('s_lshl_b32 s3,s3,15')
    a('v_lshl_add_u32 v1,v0,7,s3'); a('v_min_u32 v1,L_end0-L_go-64,v1'); a(f'global_load_dword v{PRW},v1,s[48:49]')
    a('s_branch L_main')
    return L

def setup_main(opt):
    L = []; a = L.append
    a('s_and_b32 s3,s2,7'); a('s_lshr_b32 s4,s3,2')
    if opt.get('map', 'a') == 'a':
        a('s_and_b32 s3,s3,3'); a('s_lshl_b32 s3,s3,1'); a('s_bfe_u32 s5,s2,0x10003'); a('s_or_b32 s5,s5,s3')
        a('s_lshr_b32 s6,s2,4')
    else:
        a('s_bfe_u32 s3,s2,0x10001'); a('s_lshl_b32 s3,s3,2'); a('s_bfe_u32 s5,s2,0x20003'); a('s_or_b32 s5,s5,s3')
        a('s_and_b32 s3,s2,1'); a('s_lshl_b32 s3,s3,3'); a('s_lshr_b32 s6,s2,5'); a('s_or_b32 s6,s6,s3')
    a('v_lshrrev_b32 v1,6,v0'); a('v_and_b32 v0,63,v0'); a(f's_mov_b32 s{sFLAG},0'); a(f'v_readfirstlane_b32 s{sW},v1')
    a('v_and_b32 v2,15,v0')
    a('v_lshrrev_b32 v3,4,v0')
    a('v_lshrrev_b32 v4,3,v0')
    a('v_and_b32 v5,7,v0'); a('v_and_b32 v6,6,v4'); a('v_xor_b32 v5,v5,v6'); a('v_lshlrev_b32 v5,4,v5')
    a(f's_lshl_b32 s{sW4K},s{sW},12'); a(f's_lshl_b32 s{sW1K},s{sW},10'); a(f's_mov_b32 s{sTMP+9},4096'); a(f's_mov_b32 s{sCS},{CSCALE:#x}')
    a('v_lshl_add_u32 v5,v4,10,v5')
    a(f'v_lshl_add_u32 v{vDX},v1,15,v5')
    a('v_and_b32 v6,1,v1'); a('v_lshrrev_b32 v7,1,v1')
    a('v_lshl_add_u32 v5,v6,13,v5'); a('v_lshl_add_u32 v5,v7,7,v5'); a(f'v_add_u32 v{vDXr},131072,v5')
    a('v_lshlrev_b32 v8,1,v3'); a('v_xor_b32 v8,v2,v8')
    a('v_lshlrev_b32 v9,4,v8'); a('v_lshl_add_u32 v9,v3,8,v9'); a(f'v_lshl_add_u32 v{vDK},v1,12,v9'); a(f'v_xor_b32 v{vDK+1},128,v{vDK}')
    a('v_and_b32 v9,12,v8'); a('v_bfe_u32 v10,v8,1,1'); a('v_or_b32 v9,v9,v10'); a('v_and_b32 v10,1,v8'); a('v_lshl_or_b32 v9,v10,1,v9')
    a('v_lshlrev_b32 v9,4,v9')
    a('v_lshl_add_u32 v10,v6,2,v3'); a('v_lshl_add_u32 v10,v7,5,v10')
    a(f'v_lshl_add_u32 v{vDW},v10,13,v9'); a(f'v_xor_b32 v{vDW+1},128,v{vDW}'); a(f'v_add_u32 v{vDW+1},64512,v{vDW+1}')
    if opt.get('rotq', 'b') == 'b': a('s_and_b32 s3,s6,3')
    elif opt['rotq'] == 'bh': a('s_lshl_b32 s3,s5,1'); a('s_add_u32 s3,s3,s6'); a('s_and_b32 s3,s3,3')
    elif opt['rotq'] == 'bh1': a('s_add_u32 s3,s5,s6'); a('s_and_b32 s3,s3,3')
    else: a('s_mov_b32 s3,0')
    a('s_lshl_b32 s3,s3,8')
    for D in range(8):
        a(f's_and_b32 s{sTX+D},s3,0x380'); a(f's_lshl_b32 s{sTW+D},s{sTX+D},12')
        if D < 7: a('s_add_u32 s3,s3,128')
    for d, n in ((sX, 147456), (sK, 524288), (sV, 524288), (sWo, 524288), (sWS, 147456)): a(f's_mov_b32 s{d+2},{n}')
    for d in (sX, sK, sV, sWq, sWo, sWS): a(f's_mov_b32 s{d+3},0x20000')
    a(f's_mul_i32 s{sTMP},s6,147456')
    a('s_lshl_b32 s7,s6,3'); a('s_add_u32 s7,s7,s5'); a(f's_lshl_b32 s{sTMP+1},s7,19')
    a(f's_lshl_b32 s{sTMP+2},s5,10'); a(f's_sub_u32 s{sWq+2},4194304,s{sTMP+2}')
    a(f's_lshl_b32 s{sTMP+3},s5,19')
    a('s_lshl_b32 s3,s4,7'); a('s_add_u32 s7,s7,s3'); a('s_mul_i32 s7,s7,147456')
    a('s_cmp_eq_u32 s4,0')
    a('s_waitcnt lgkmcnt(0)')
    for d, x, y in ((sX, 64, 74), (sK, 66, 76), (sV, 68, 78), (sWq, 70, 80), (sWo, 72, 82)):
        a(f's_cselect_b64 s[{d}:{d+1}],s[{x}:{x+1}],s[{y}:{y+1}]')
    def adv(d, off): a(f's_add_u32 s{d},s{d},s{off}'); a(f's_addc_u32 s{d+1},s{d+1},0')
    adv(sX, sTMP); adv(sWq, sTMP + 2); adv(sK, sTMP + 1); adv(sV, sTMP + 1); adv(sWo, sTMP + 3)
    a(f's_add_u32 s{sWS},s88,s7'); a(f's_addc_u32 s{sWS+1},s89,0')
    return L

def sizes(lines):
    import subprocess, re
    src = '.amdgcn_target "amdgcn-amd-amdhsa--gfx950"\n.text\n' + MACROS + '\n'.join(l for l in lines if l[0] != '@') + '\n'
    open('_sz.s', 'w').write(src)
    subprocess.run(['clang', '-x', 'assembler', '-target', 'amdgcn-amd-amdhsa', '-mcpu=gfx950', '-c', '_sz.s', '-o', '_sz.o'], check=True)
    d = subprocess.run(['llvm-objdump', '-d', '--mcpu=gfx950', '_sz.o'], capture_output=True, text=True).stdout
    sz = [4 * len(m.group(1).split()) for m in re.finditer(r'// [0-9A-F]+: ([0-9A-F ]+)', d)]
    it = iter(sz)
    return [0 if (l[0] == '@' or l.endswith(':')) else next(it) for l in lines]

def paginate(lines, plan):
    sz = sizes(lines)
    total = sum(sz); npages = (total + 1200) // 4096
    out = []; pos = 0; back = {}; nxt = 1; done = set()
    for k, (l, z) in enumerate(zip(lines, sz)):
        if l[0] == '@':
            r = plan.get(l[1:], 0)
            nxt = max(nxt, pos // 4096 + 1)
            if r and nxt <= npages:
                out.append(f's_mov_b32 s{sFLAG},1'); pos += 4
                for j in range(r):
                    lab = f'L_bk{l[1:]}_{j}'
                    for w in range(4):
                        if nxt > npages: break
                        out += [f's_cmp_eq_u32 s{sW},{w}', f's_cbranch_scc1 L_pg{nxt}']; pos += 8
                        back[nxt] = lab; nxt += 1
                    out.append(lab + ':')
                out.append(f's_mov_b32 s{sFLAG},0'); pos += 4
            continue
        out.append(l); pos += z
        pg = pos // 4096
        if pg in back and pg not in done and (l[:2] == 'M ' or pos % 4096 >= 40) and not l.startswith(('s_add_u32 s', 's_cmp')):
            assert pos % 4096 <= 56
            out += [f'L_pg{pg}:', f's_cmp_eq_u32 s{sFLAG},1', f's_cbranch_scc1 {back[pg]}']; pos += 8; done.add(pg)
    for pg in back:
        if pg not in done: out += [f'L_pg{pg}:', f's_cmp_eq_u32 s{sFLAG},1', f's_cbranch_scc1 {back[pg]}']
    return out

def setup_late(g):
    V = lambda x: f'v{x}'
    def op(t, rd, wr): g.valu(t, [V(x) for x in rd], [V(x) for x in wr])
    op('v_and_b32 v8,6,v2', [2], [8]); op('v_xor_b32 v8,v3,v8', [3, 8], [8]); op('v_lshlrev_b32 v8,4,v8', [8], [8])
    op('v_lshl_add_u32 v8,v2,7,v8', [2, 8], [8])
    op(f'v_add_u32 v{vXr},{XR},v8', [8], [vXr]); op(f'v_xor_b32 v{vXr+1},64,v{vXr}', [vXr], [vXr + 1])
    op('v_lshl_add_u32 v8,v1,12,v8', [1, 8], [8])
    op(f'v_add_u32 v{vX},{XWIN},v8', [8], [vX]); op(f'v_xor_b32 v{vX+1},64,v{vX}', [vX], [vX + 1])
    op('v_lshrrev_b32 v9,2,v0', [0], [9])
    op('v_bfe_u32 v10,v0,1,1', [0], [10]); op('v_lshl_add_u32 v10,v1,2,v10', [1, 10], [10])
    op('v_and_b32 v11,7,v9', [9], [11]); op('v_lshlrev_b32 v11,1,v11', [11], [11]); op('v_xor_b32 v10,v10,v11', [10, 11], [10])
    op('v_lshlrev_b32 v10,4,v10', [10], [10]); op('v_lshl_add_u32 v10,v9,8,v10', [9, 10], [10])
    op('v_and_b32 v11,1,v0', [0], [11]); op('v_lshl_add_u32 v10,v11,3,v10', [10, 11], [10])
    op(f'v_add_u32 v{vV},{VS[0]},v10', [10], [vV]); op(f'v_add_u32 v{vW},{WS_[0]},v10', [10], [vW])
    for ul in range(1, 8):
        op(f'v_xor_b32 v{vW+ul},{ul*32},v{vW}', [vW], [vW + ul]); op(f'v_xor_b32 v{vV+ul},{ul*32},v{vV}', [vV], [vV + ul])
    op('v_lshl_add_u32 v12,v1,2,v3', [1, 3], [12]); op('v_and_b32 v13,7,v2', [2], [13]); op('v_lshlrev_b32 v13,1,v13', [13], [13])
    op('v_xor_b32 v12,v12,v13', [12, 13], [12]); op('v_lshlrev_b32 v12,4,v12', [12], [12])
    op(f'v_lshl_add_u32 v{vK},v2,8,v12', [2, 12], [vK]); op(f'v_lshl_add_u32 v{vKr},v1,12,v{vK}', [1, vK], [vKr])
    for sl in range(1, 4):
        op(f'v_xor_b32 v{vK+sl},{sl*64},v{vK}', [vK], [vK + sl]); op(f'v_xor_b32 v{vKr+sl},{sl*64},v{vKr}', [vKr], [vKr + sl])
    op('v_lshlrev_b32 v14,4,v0', [0], [14]); op(f'v_add_u32 v{vL16},{PR},v14', [14], [vL16])
    op(f'v_lshl_add_u32 v15,v7,10,v{vL16}', [7, vL16], [15]); op(f'v_lshl_add_u32 v{vPw},v6,3,v15', [6, 15], [vPw])
    op('v_lshl_add_u32 v14,v1,10,v14', [1, 14], [14]); op(f'v_add_u32 v{vGw},{GB},v14', [14], [vGw])
    op('v_mov_b32 v15,0x3f803f80', [], [15])
    for i in range(4): g.awr(aONE + i, 15)

def reduce_kernel():
    L = []; a = L.append
    a('s_cmp_ge_u32 s2,256'); a('s_cbranch_scc1 L_exit1')
    a('s_load_dwordx2 s[4:5],s[0:1],80'); a('s_load_dwordx2 s[6:7],s[0:1],96')
    a('s_lshr_b32 s3,s2,3'); a('s_and_b32 s16,s2,7')
    a('v_lshrrev_b32 v1,6,v0'); a('v_and_b32 v0,63,v0')
    a('v_mul_u32_u24 v2,4608,v1'); a('v_lshl_add_u32 v3,v0,4,v2'); a('v_lshl_add_u32 v4,v0,3,v2'); a('v_add_u32 v4,4096,v4')
    a('s_mul_i32 s17,s3,1179648'); a('s_mul_i32 s18,s16,18432'); a('s_add_u32 s17,s17,s18')
    a('s_waitcnt lgkmcnt(0)')
    a('s_add_u32 s8,s6,s17'); a('s_addc_u32 s9,s7,0'); a('s_mov_b32 s10,1050624'); a('s_mov_b32 s11,0x20000')
    a('s_mov_b32 s19,0')
    for h in range(8):
        for q in range(4): a(f'buffer_load_dwordx4 v[{64+h*20+q*4}:{67+h*20+q*4}],v3,s[8:11],s19 offen offset:{q*1024}')
        a(f'buffer_load_dwordx2 v[{80+h*20}:{81+h*20}],v4,s[8:11],s19 offen')
        a('s_add_u32 s19,s19,147456')
    a('s_and_b32 s20,s3,15'); a('s_mul_i32 s20,s20,294912'); a('s_lshr_b32 s21,s3,4'); a('s_lshl_b32 s21,s21,10'); a('s_add_u32 s20,s20,s21')
    a('s_lshl_b32 s21,s16,7'); a('s_add_u32 s20,s20,s21')
    a('s_mov_b32 s12,s4'); a('s_mov_b32 s13,s5'); a('s_mov_b32 s14,4718592'); a('s_mov_b32 s15,0x20000')
    a('v_and_b32 v5,15,v0'); a('v_lshrrev_b32 v6,4,v0')
    a('v_lshl_add_u32 v7,v1,5,v5'); a('v_lshlrev_b32 v7,11,v7')
    a('v_and_b32 v8,1,v6'); a('v_xor_b32 v8,v8,v1'); a('v_lshl_add_u32 v7,v8,5,v7'); a('v_lshrrev_b32 v8,1,v6'); a('v_lshl_add_u32 v7,v8,4,v7')
    a('v_xor_b32 v9,64,v7')
    a('v_add_u32 v10,128,v5'); a('v_lshlrev_b32 v10,11,v10'); a('v_lshl_add_u32 v10,v1,5,v10'); a('v_lshl_add_u32 v10,v6,3,v10')
    for h in range(8):
        a(f's_waitcnt vmcnt({(7-h)*5})')
        for i in range(18):
            x = 64 + h * 20 + i
            if h == 0:
                a(f'v_lshlrev_b32 v{16+2*i},16,v{x}'); a(f'v_and_b32 v{17+2*i},0xffff0000,v{x}')
            else:
                a(f'v_lshlrev_b32 v11,16,v{x}'); a(f'v_and_b32 v{x},0xffff0000,v{x}')
                a(f'v_add_f32 v{16+2*i},v{16+2*i},v11'); a(f'v_add_f32 v{17+2*i},v{17+2*i},v{x}')
    for i in range(18): a(f'C v{64+i},v{16+2*i},v{17+2*i}')
    a('s_nop 1')
    for q in range(4):
        a(f'v_permlane16_swap_b32 v{64+q*4},v{66+q*4}'); a(f'v_permlane16_swap_b32 v{65+q*4},v{67+q*4}')
    a('s_add_u32 s21,s20,32768')
    for q in range(4):
        a(f'buffer_store_dwordx4 v[{64+q*4}:{67+q*4}],v{9 if q&1 else 7},s[12:15],s{21 if q>>1 else 20} offen')
    a('buffer_store_dwordx2 v[80:81],v10,s[12:15],s20 offen')
    a('L_exit1:'); a('s_endpgm')
    return L

def kd(name, vg, ao, sg=102):
    return f""".amdhsa_kernel {name}
  .amdhsa_next_free_vgpr {vg}
  .amdhsa_next_free_sgpr {sg}
  .amdhsa_accum_offset {ao}
  .amdhsa_group_segment_fixed_size 0
  .amdhsa_kernarg_size 104
  .amdhsa_user_sgpr_count 2
  .amdhsa_user_sgpr_kernarg_segment_ptr 1
  .amdhsa_system_sgpr_workgroup_id_x 1
.end_amdhsa_kernel
"""

def generate(opt):
    g = G(opt)
    setup_late(g)
    body, st = g.build()
    hdr = open('cdna_kernels/' + KN + '.s.ref').read().split('; Override launch')[0]
    s = hdr
    s += f'; @launch kernel={KN}_kernel grid=(256,1,1) block=(256,1,1) lds={LDS_BYTES}\n'
    s += f'; @launch kernel=reduce_kernel grid=(256,1,1) block=(256,1,1) lds=0\n'
    s += '.amdgcn_target "amdgcn-amd-amdhsa--gfx950"\n.text\n' + MACROS
    s += f'.globl {KN}_kernel\n.p2align 8\n.type {KN}_kernel,@function\n{KN}_kernel:\n'
    tail = []
    if opt.get('stamp'):
        n = st['nstamp']
        tail += ['s_memtime s[62:63]', 's_waitcnt vmcnt(0) lgkmcnt(0)']
        for j, r in enumerate((60, 62, 90)): tail.append(f'v_writelane_b32 v{TMP+2*j+(n>>6)},s{r},{n&63}')
        n += 1
        tail += ['s_memtime s[60:61]', 's_memrealtime s[90:91]', 's_waitcnt lgkmcnt(0)']
        for j, r in enumerate((60, 62, 90)): tail.append(f'v_writelane_b32 v{TMP+2*j+(n>>6)},s{r},{n&63}')
        tail += ['s_add_u32 s8,s88,0x4000000', 's_addc_u32 s9,s89,0', 's_mov_b32 s10,0x1000000',
                 f's_lshl_b32 s3,s2,2', f's_add_u32 s3,s3,s{sW}', 's_mul_i32 s3,s3,1536',
                 f'v_subrev_u32 v0,{PR},v{vL16}', 'v_lshrrev_b32 v0,2,v0']
        for j in range(6): tail.append(f'buffer_store_dword v{TMP+j},v0,s[8:11],s3 offen offset:{j*256}')
        print('; nstamp', n + 1)
    plan = dict((x.split(':')[0], int(x.split(':')[1])) for x in opt.get('touch', 'touch0:3,touchJ14:2,touchJ26:2').split(',') if x)
    main = paginate(setup_main(opt) + body, plan)
    s += '\n'.join(setup_entry(opt)) + '\n.p2align 12\nL_main:\n' + '\n'.join(main + tail) + '\nL_end0:\ns_endpgm\n'
    s += '.globl reduce_kernel\n.p2align 8\n.type reduce_kernel,@function\nreduce_kernel:\n' + '\n'.join(reduce_kernel()) + '\n'
    s += '.section .rodata,"a"\n.p2align 6\n' + kd(KN + '_kernel', 512, 256) + '.p2align 6\n' + kd('reduce_kernel', 224, 224, 32)
    return s

if __name__ == '__main__':
    opt = dict(a.split('=') for a in sys.argv[2:])
    open(sys.argv[1], 'w').write(generate(opt))
```

```python
import heapq

class Op:
    __slots__ = ('kind', 'text', 'rd', 'wr', 'crd', 'cost', 'preds', 'succs', 'idx', 'dl', 'npred', 'pos', 't',
                 'k', 'soft', 'seq', 'prio', 'tag')
    def __init__(s, kind, text, rd=(), wr=(), crd=(), cost=1, prio=None, tag=None):
        s.kind = kind; s.text = text; s.rd = tuple(rd); s.wr = tuple(wr); s.crd = tuple(crd)
        s.cost = cost; s.preds = {}; s.succs = []; s.pos = None; s.t = None; s.prio = prio; s.tag = tag
        s.seq = None

VALU = ('valu', 'trans', 'perm')
DS = ('dsr', 'dsw')
VM = ('dma', 'store', 'load')

def regs(c, a, n=1): return [f'{c}{a+i}' for i in range(n)]

class Prog:
    def __init__(s):
        s.ops = []; s.lastw = {}; s.readers = {}
        s.last_salu = None; s.last_vm = None; s.last_bar = None; s.ds_since_bar = []; s.ds_after = None
        s.stampset = None; s.DSSPACE = 0.8; s.TTMARGIN = 8.0
        s.DSLAT = 7.0; s.DMAGAP = 64; s.SAFE = 128
    def edge(s, a, b, states=0, lat=0, wait=None, dgap=0.0):
        if a is b: return
        e = b.preds.get(a)
        if e is None:
            b.preds[a] = [states, lat, wait, dgap]; a.succs.append(b)
        else:
            e[0] = max(e[0], states); e[1] = max(e[1], lat); e[2] = e[2] or wait; e[3] = max(e[3], dgap)
    def add(s, op):
        op.idx = len(s.ops)
        k = op.kind
        for r in op.rd:
            p = s.lastw.get(r)
            if p is not None: s.raw(p, op, r)
        for r in op.wr:
            p = s.lastw.get(r)
            if p is not None: s.waw(p, op, r)
            for q in s.readers.get(r, ()): s.war(q, op, r)
        for r in op.wr:
            s.lastw[r] = op; s.readers[r] = []
        for r in op.rd:
            if r not in op.wr or True: s.readers.setdefault(r, []).append(op)
        if k == 'salu':
            if s.last_salu: s.edge(s.last_salu, op, dgap=1.0)
            s.last_salu = op
        if k in VM:
            if s.last_vm: s.edge(s.last_vm, op, lat=s.DMAGAP, dgap=1.0)
            s.last_vm = op
        if k in DS:
            b = s.ds_after or s.last_bar
            if b: s.edge(b, op, dgap=0.5)
            s.ds_since_bar.append(op)
        if k == 'bar':
            for d in s.ds_since_bar: s.edge(d, op, lat=88, wait='lgkm', dgap=5.5)
            if s.last_bar: s.edge(s.last_bar, op)
            s.ds_since_bar = []; s.last_bar = op
        s.ops.append(op)
        return op
    def raw(s, p, c, r):
        pk, ck = p.kind, c.kind
        if pk == 'mfma':
            if ck == 'mfma':
                if r in c.crd and p.wr == c.crd: s.edge(p, c)
                else: s.edge(p, c, states=8)
            else: s.edge(p, c, states=8, lat=44, dgap=0)
        elif pk in VALU:
            if ck == 'mfma': s.edge(p, c, states=2, dgap=1.0)
            elif ck == 'perm': s.edge(p, c, states=2, lat=12, dgap=0.5 * p.cost + 0.5)
            elif ck == 'salu': s.edge(p, c, states=4, lat=20, dgap=1.5)
            elif ck in VALU: s.edge(p, c, states=(1 if pk == 'trans' else (2 if r[0] == 's' or r == 'vcc' else 0)), lat=4 * p.cost + 4, dgap=0.5 * p.cost)
            else: s.edge(p, c, states=(5 if r[0] == 's' else 1), lat=12, dgap=1.0)
        elif pk == 'dsr':
            s.edge(p, c, lat=96, wait='lgkm', dgap=s.DSLAT)
        elif pk in ('dma', 'load', 'store'):
            s.edge(p, c, wait='vm', dgap=2.0, lat=(1000 if pk == 'load' else 0))
        elif pk == 'salu':
            s.edge(p, c, states=(1 if r == 'm0' else 0), dgap=0.0)
        else:
            s.edge(p, c)
    def waw(s, p, c, r):
        pk, ck = p.kind, c.kind
        if pk == 'mfma':
            if ck == 'mfma': s.edge(p, c)
            else: s.edge(p, c, states=8, lat=44)
        elif pk == 'dsr': s.edge(p, c, lat=96, wait='lgkm', dgap=s.DSLAT)
        elif pk == 'load': s.edge(p, c, wait='vm')
        elif pk in VALU and ck == 'mfma': s.edge(p, c, states=2, dgap=1.0)
        else: s.edge(p, c)
    def war(s, q, c, r):
        qk, ck = q.kind, c.kind
        if qk == 'mfma' and r in q.crd and ck != 'mfma': s.edge(q, c, states=3)
        elif qk == 'store' and r[0] in 'va': s.edge(q, c, states=2, dgap=0.5)
        elif qk == 'dsr' and r[0] == '$': s.edge(q, c, lat=96, wait='lgkm', dgap=s.DSLAT)
        else: s.edge(q, c, dgap=(0.5 if ck == 'mfma' else 0.0))

    def schedule(s, vm_before=0, verbose=True, stamp=None):
        ops = s.ops
        k = 0
        for o in ops:
            if o.kind == 'mfma': o.k = k; k += 1
            else: o.k = k
        nm = k
        cap = {}
        for it in range(3):
            for o in reversed(ops):
                if o.kind == 'mfma': o.dl = float(o.k)
                else:
                    d = None
                    for c in o.succs:
                        x = c.dl - c.preds[o][3]
                        if d is None or x < d: d = x
                    if d is None: d = o.k + 24.0
                    if o.prio is not None: d = min(d, o.k + o.prio)
                    if o in cap: d = min(d, cap[o])
                    o.dl = d
            if it == 2 or not s.DSSPACE: break
            nx = 1e18
            for o in sorted((o for o in ops if o.kind in DS), key=lambda o: (-o.dl, -o.idx)):
                nx = min(o.dl, nx - s.DSSPACE); cap[o] = nx
        for o in ops: o.npred = len(o.preds); o.soft = 0
        ready = []
        out = []
        st = dict(pos=0, t=0, ds=0, vm=vm_before, dscov=0, vmcov=0, nops=0, extra=0, waits=0, stall=0, nstamp=0)
        dst = []
        def release(o):
            for c in o.succs:
                e = c.preds[o]
                c.soft = max(c.soft, o.t + e[1])
                c.npred -= 1
                if c.npred == 0 and c.kind != 'mfma': ready.append(c)
        def hard_gap(o, pos):
            n = 0
            for p, e in o.preds.items():
                if e[0]: n = max(n, e[0] - (pos - p.pos - 1))
            return n
        def need_wait(o):
            lg = vm = None
            for p, e in o.preds.items():
                if p.pos is None: continue
                if e[2] == 'lgkm' and p.seq > st['dscov']: lg = max(lg or 0, p.seq)
                if e[2] == 'vm' and p.seq > st['vmcov']: vm = max(vm or 0, p.seq)
            return lg, vm
        def emit_raw(text, cost):
            out.append(text); st['pos'] += 1; st['t'] += cost
        def emit_wait(lg, vm, cost):
            parts = []
            if vm is not None:
                n = min(st['vm'] - vm, 63); parts.append(f'vmcnt({n})'); st['vmcov'] = st['vm'] - n
            if lg is not None:
                while lg < st['ds'] and dst[lg] + s.SAFE <= st['t']: lg += 1
                n = min(st['ds'] - lg, 15); parts.append(f'lgkmcnt({n})'); st['dscov'] = st['ds'] - n
            emit_raw('s_waitcnt ' + ' '.join(parts), cost); st['waits'] += 1
        def emit(o, cost):
            lg, vm = need_wait(o)
            if o.kind == 'bar' and o.tag: out.append('@' + o.tag)
            if o.kind == 'bar' and stamp is not None and (s.stampset is None or o.tag in s.stampset):
                emit_raw('s_memtime s[62:63]', 4); lg = st['ds']
            if lg is not None or vm is not None:
                emit_wait(lg, vm, 4)
            if o.soft > st['t'] and (o.kind in ('mfma', 'bar') or lg is not None):
                st['stall'] += o.soft - st['t']; st['t'] = o.soft
            n = hard_gap(o, st['pos'])
            if n > 0:
                out.append(f's_nop {n-1}'); st['pos'] += n; st['t'] += 4 * n; st['nops'] += n
            o.pos = st['pos']; o.t = st['t']
            if o.kind in DS: st['ds'] += 1; o.seq = st['ds']; dst.append(st['t'])
            if o.kind in VM: st['vm'] += 1; o.seq = st['vm']
            emit_raw(o.text, cost)
            if o.kind == 'bar' and stamp is not None and (s.stampset is None or o.tag in s.stampset):
                n = st['nstamp']; st['nstamp'] += 1
                for j, r in enumerate((60, 62, 90)): emit_raw(f'v_writelane_b32 v{stamp+2*j+(n>>6)},s{r},{n&63}', 4)
                emit_raw('s_memtime s[60:61]', 4); emit_raw('s_memrealtime s[90:91]', 4)
            release(o)
        for o in ops:
            if o.npred == 0 and o.kind != 'mfma': ready.append(o)
        mf = [o for o in ops if o.kind == 'mfma']
        order = {'dsr': 0, 'dsw': 1, 'dma': 2, 'load': 2, 'store': 3, 'valu': 4, 'trans': 4, 'perm': 4}
        def forced(target):
            while (target.npred > 0 if target is not None else ready):
                assert ready, 'deadlock'
                lim = (target.k + 0.01) if target is not None else 1e18
                cand = [o for o in ready]
                t = st['t']; pos = st['pos']
                good = [o for o in cand if o.soft <= t + 2 and hard_gap(o, pos) == 0]
                if good: o = min(good, key=lambda o: (o.dl, o.idx))
                else:
                    urg = [o for o in cand if o.dl <= lim] or cand
                    o = min(urg, key=lambda o: (max(o.soft - t, 4 * hard_gap(o, pos)), o.dl))
                ready.remove(o)
                c = 20 if o.kind == 'bar' else 4 * o.cost
                emit(o, c); st['extra'] += c
        marks = []
        for i, m in enumerate(mf):
            forced(m)
            if i and st['t'] < mf[i-1].t + 16: st['t'] = mf[i-1].t + 16
            emit(m, 4)
            if m.tag: marks.append((m.tag, st['t'], i))
            t0 = m.t; nxt = mf[i+1] if i + 1 < nm else None
            scal = None
            bars = [o for o in ready if o.kind == 'bar' and (o.soft <= t0 + 6 or o.dl <= i)]
            if bars:
                b = bars[0]; ready.remove(b)
                emit(b, 16); st['extra'] += 16
                scal = True
            tv = max(st['t'], t0 + 8)
            pick = []; slots = 0
            cand = [o for o in ready if o.kind not in ('salu', 'bar') and o.soft <= tv + 2 and hard_gap(o, st['pos']) == 0]
            cand.sort(key=lambda o: ((-1e9 if o.kind in ('dma', 'load') else o.dl), o.idx))
            if cand:
                first = cand[0]
                ones = [o for o in cand if o.cost == 1]
                twos = [o for o in cand if o.cost >= 2]
                if first.cost >= 2: pick = [first]
                elif len(ones) >= 2:
                    sec = [o for o in ones[1:] if not (o.kind in DS and first.kind in DS and o.dl > i + s.TTMARGIN)]
                    if sec: pick = [first, sec[0]]
                    elif twos and first.dl > i + s.TTMARGIN: pick = [twos[0]]
                    else: pick = [first]
                elif twos and first.dl > i + 2 and first.kind not in ('dma', 'load'): pick = [twos[0]]
                else: pick = [first]
                for o in cand:
                    if o not in pick and o.dl <= i + 0.25 and o.kind not in VM: pick.append(o)
            pick.sort(key=lambda o: (order[o.kind], o.dl, o.idx))
            lg = vm = None
            for o in pick + ([nxt] if nxt is not None else []):
                a, b2 = need_wait(o)
                if o is nxt and nxt.soft > t0 + 16 + 12 and False: continue
                if a is not None: lg = max(lg or 0, a)
                if b2 is not None: vm = max(vm or 0, b2)
            if lg is not None or vm is not None:
                emit_wait(lg, vm, 4)
                if scal: st['extra'] += 4
                scal = True
            sal = [o for o in ready if o.kind == 'salu' and hard_gap(o, st['pos']) == 0]
            if sal and (not scal or sum(o.cost for o in pick) < 2 or sal[0].dl <= i):
                o = sal[0]; ready.remove(o); emit(o, 4)
            if st['t'] < t0 + 8: st['t'] = t0 + 8
            for o in pick:
                ready.remove(o); emit(o, 4 * o.cost)
            if st['t'] > t0 + 16: st['extra'] += 0
        forced(None)
        assert all(o.pos is not None for o in ops)
        if verbose:
            print(f"; sched: mfma={nm} instrs={st['pos']} est_cycles={st['t']} ideal={16*nm} nops={st['nops']} waits={st['waits']} stall={st['stall']}")
            prev = None
            for tag, t, i in marks:
                if prev: print(f";   {prev[0]}: {t-prev[1]} cyc, {i-prev[2]} mfma")
                prev = (tag, t, i)
        return out, st
```

```python
import sys, struct, math
from sched import *

KN = 'concat_heads__mha_block_cached__gqa_block_cached__near_ridge'
def f2u(x): return struct.unpack('<I', struct.pack('<f', x))[0]
CSCALE = f2u(math.log2(math.e) / math.sqrt(128.0))

KS = [0, 16384, 32768]; XB = 49152
VS = [65536, 81920, 98304]
XR = 114688; PR = XR + 8192; GB = XR + 12288
WS_ = [131072, 147456]
LDS_BYTES = 163840
XWIN = 32768
OA = 0; QA = 72; SB = 144; SR = 160; PB = 164; MB = 196; PRW = 208
vK = 210; vKr = 214; vV = 218; vW = 226; vX = 234; vXr = 236; vPw = 238; vL16 = 239; vGw = 240
vDK = 241; vDW = 243; vDX = 245; vDXr = 246; TMP = 247
vPo = QA + 56
vPo2 = vK
vSt = vW
vOut = vW + 2; vZ = vW + 5; vF = vW + 6; vOne = vX; SUM = OA + 36
def LAND(c): return SB + 20 * (c % 3)
FLOFF = 40 << 20
def RG(u): return 48 * u
aONE = 192; aPR = 196; aL = 204; aPOOL = 216
sK = 8; sV = 12; sWq = 16; sX = 20; sWo = 24; sWS = 28; sOUT = 32
sT = 64; sW = 44; sW4K = 45; sW1K = 46; sTW = 36; sTX = 92; sTC = 72
sTMP = 50; sFLAG = 47; sCS = 58; sFL = 80; sDBG = 84; sSPIN = 100; sFO = 101; sHS = 48; sHD = 49

def rr(c, a, n): return f'{c}[{a}:{a+n-1}]' if n > 1 else f'{c}{a}'

class G:
    def __init__(s, opt):
        s.p = Prog(); s.opt = opt; s.ik = opt.get('ik', '1') == '1'
        for k in ('DSLAT', 'DMAGAP'):
            if k in opt: setattr(s.p, k, float(opt[k]))
        s.pool = []; s.lastuse = {}; s.tick = 0; s.stmp = 0; s.tagnext = None; s.lastm = None; s.ool = []; s.stores = {}
    def mfma(s, d, a, b, c=None):
        D = regs(d[0], d[1], 4)
        if c == 0: ct = '0'; C = []
        else:
            c = c or d; ct = rr(c[0], c[1], 4); C = regs(c[0], c[1], 4)
        o = Op('mfma', f'M {rr(d[0],d[1],4)},{rr(a[0],a[1],4)},{rr(b[0],b[1],4)},{ct}',
               rd=regs(a[0], a[1], 4) + regs(b[0], b[1], 4) + C, wr=D, crd=C, tag=s.tagnext)
        s.tagnext = None
        s.lastm = o
        return s.p.add(o)
    def valu(s, text, rd, wr, kind='valu', cost=1, prio=None): return s.p.add(Op(kind, text, rd, wr, cost=cost, prio=prio))
    def salu(s, text, rd=(), wr=()): return s.p.add(Op('salu', text, rd, wr))
    def exp(s, v): return s.valu(f'E v{v}', [f'v{v}'], [f'v{v}'], 'trans', 2)
    def cvt(s, d, a, b): return s.valu(f'C v{d},v{a},v{b}', [f'v{a}', f'v{b}'], [f'v{d}'])
    def swap(s, n, a, b): return s.valu(f'v_permlane{n}_swap_b32 v{a},v{b}', [f'v{a}', f'v{b}'], [f'v{a}', f'v{b}'], 'perm', 2)
    def awr(s, a, v): return s.valu(f'v_accvgpr_write_b32 a{a},v{v}', [f'v{v}'], [f'a{a}'])
    def r128(s, d, addr, off, extra=()):
        assert 0 <= off < 65536, off
        return s.p.add(Op('dsr', f'R {rr(d[0],d[1],4)},v{addr},{off}', [f'v{addr}'] + list(extra), regs(d[0], d[1], 4)))
    def rtr(s, d, half, addr, off):
        assert 0 <= off < 65536, off
        return s.p.add(Op('dsr', f'T {rr(d[0],d[1]+2*half,2)},v{addr},{off}', [f'v{addr}'], regs(d[0], d[1] + 2 * half, 2)))
    def alloc(s):
        q = min(s.pool, key=lambda x: s.lastuse.get(x, -1))
        s.tick += 1; s.lastuse[q] = s.tick
        return q
    def stemp(s):
        s.stmp = (s.stmp + 1) % 8
        return sTMP + s.stmp
    def bar(s, tiles, tag=None):
        rd = []
        for t in tiles: rd += [f'#{t}:{p}' for p in range(1 if t.startswith('xr') else 4)]
        for r in rd: assert r in s.p.lastw, r
        return s.p.add(Op('bar', 's_barrier', rd, [], tag=tag))
    def dma(s, name, p, voff, srd, soff, off, pol, after, priv=None):
        wr = [f'#{name}:{p}'] + ([f'${priv}:{p}'] if priv is not None else [])
        o = Op('dma', f'{"Dn" if pol and not s.opt.get("nohbm") else "D"} v{voff},s[{srd}:{srd+3}],s{soff},{off}', [f'v{voff}', f's{soff}', 'm0'], wr)
        s.p.add(o)
        if after is not None: s.p.edge(after, o)
        return o
    def ld_kv(s, which, n, after, priv=None):
        u, j = n >> 3, n & 7
        slot = (KS if which == 'K' else VS)[n % 3]
        s.salu(f's_add_u32 m0,s{sW4K},{slot}', wr=['m0'])
        t = s.stemp(); s.salu(f's_add_u32 s{t},s{sT+j},{u*131072}', wr=[f's{t}'])
        for p in range(4): s.dma(f'{which}{n}', p, vDK + (p & 1), sK if which == 'K' else sV, t, 1024 * p, 1, after, priv)
    def wslot(s, m): return [WS_[0], WS_[1], VS[2]][m % 3] if m < 9 else WS_[(m + 1) % 2]
    def xslot(s, m): return [XB, VS[0], KS[2], VS[1]][m % 4] if m < 8 else XB
    def ld_w(s, m, after):
        u, D = m >> 3, m & 7
        s.salu(f's_add_u32 m0,s{sW4K},{s.wslot(m)}', wr=['m0'])
        for h in range(2):
            t = s.stemp(); s.salu(f's_add_u32 s{t},s{sTW+D},{u*256+h*129024}', wr=[f's{t}'])
            for p in (2 * h, 2 * h + 1): s.dma(f'W{m}', p, vDW + (p & 1), sWq, t, 1024 * p, 0, after)
    def ld_x(s, m):
        D = m & 7; loc = s.xslot(m)
        s.salu(f's_add_u32 m0,s{sW4K},{loc}', wr=['m0'])
        for p in range(4):
            if p: t = s.stemp(); s.salu(f's_add_u32 s{t},s{sTX+D},{7168*p}', wr=[f's{t}'])
            else: t = sTX + D
            s.dma(f'X{m}', p, vDX, sX, t, 1024 * p, 0, None, loc)
    def ld_xr(s, m2, after):
        s.salu(f's_add_u32 m0,s{sW1K},{XR+(m2&1)*4096}', wr=['m0'])
        s.dma(f'xr{m2}', 0, vDXr, sX, sTX + ((2 * m2) & 7), 0, 0, after)
    PSL = [XB, KS[2], KS[0], KS[1], WS_[0], WS_[1], VS[2]]
    def ld_wo(s, n, after):
        c, u = n >> 2, n & 3
        s.salu(f's_add_u32 m0,s{sW4K},{s.PSL[n%7]}', wr=['m0'])
        for p in range(4):
            t = s.stemp(); s.salu(f's_add_u32 s{t},s{sTC+c},{u*131072+7168*p}', wr=[f's{t}'])
            s.dma(f'O{n}', p, vDX, sWo, t, 1024 * p, 0, after, XB if n == 0 else None)
    def xfrag(s, m): return (RG(2) + 24 * (m & 1)) if m < 8 else RG(m >> 3) + 24
    def rd_x(s, m):
        xf = s.xfrag(m); loc = s.xslot(m)
        for sg in range(2):
            for t in range(2):
                s.r128(('a', xf + (t * 2 + sg) * 4), vX + sg, loc - XWIN + t * 2048, [f'${loc}:{2*t}', f'${loc}:{2*t+1}'])
        for sg in range(2):
            s.r128(('a', xf + 16 + sg * 4), vXr + sg, ((m >> 1) & 1) * 4096 + (m & 1) * 2048)
    def qp(s, m, ul):
        acc = OA if m < 8 else QA
        xf = s.xfrag(m); slot = s.wslot(m)
        areg, base = (vW, WS_[0]) if slot >= WS_[0] else (vV, VS[0])
        fr = []
        for sg in range(2):
            f = s.alloc(); fr.append(f)
            for jj in range(2): s.rtr(f, jj, areg + ul, slot - base + (2 * sg + jj) * 4096)
        for t in range(3 if ul < 2 else 2):
            d = ('v', acc + t * 32 + ul * 4)
            for sg in range(2): s.mfma(d, fr[sg], ('a', xf + (t * 2 + sg) * 4), 0 if (m & 7) == 0 and sg == 0 else None)
    def qfin(s, u, pair, t):
        acc = (OA if u == 0 else QA) + t * 32 + pair * 8
        for i in range(8): s.valu(f'v_mul_f32 v{acc+i},s{sCS},v{acc+i}', [f'v{acc+i}'], [f'v{acc+i}'])
        for i in range(4): s.cvt(acc + i, acc + 2 * i, acc + 2 * i + 1)
        s.swap(16, acc, acc + 2); s.swap(16, acc + 1, acc + 3)
        if t < 2:
            for i in range(4): s.awr(RG(u) + (t * 4 + pair) * 4 + i, acc + i)
        else:
            s.p.add(Op('dsw', f'ds_write_b128 v{vGw},{rr("v",acc,4)}', [f'v{vGw}'] + regs('v', acc, 4), [], cost=5))
    def gather(s, u, first):
        for sl in range(first, 4):
            if sl:
                s.valu(f'v_xor_b32 v{TMP+5+sl},{sl*1024},v{vGw}', [f'v{vGw}'], [f'v{TMP+5+sl}'])
            s.r128(('a', RG(u) + 32 + 4 * sl), TMP + 5 + sl if sl else vGw, 0)
    def rowmax(s, src, t):
        a, b = MB + 4 * t, MB + 4 * t + 1
        V = lambda x: f'v{x}'
        s.valu(f'v_max3_f32 v{a},v{src},v{src+1},v{src+2}', regs('v', src, 3), [V(a)])
        s.valu(f'v_max_f32 v{a},v{a},v{src+3}', [V(a), V(src + 3)], [V(a)])
        for n in (16, 32):
            s.valu(f'v_mov_b32 v{b},v{a}', [V(a)], [V(b)])
            s.swap(n, a, b)
            if n == 16: s.valu(f'v_max_f32 v{a},v{a},v{b}', [V(a), V(b)], [V(a)])
            else: s.valu(f'v_min_f32_e64 v{a},-v{a},-v{b}', [V(a), V(b)], [V(a)])
        for i in range(1, 4): s.valu(f'v_mov_b32 v{a+i},v{a}', [V(a)], [V(a + i)])
    def qk(s, n, kt):
        u = n >> 3; init = (n & 7) == 0 and kt == 0
        fr = [s.alloc() for _ in range(4)]
        for sl in range(4): s.r128(fr[sl], vK + sl, KS[n % 3] + kt * 4096)
        sb = SB + (kt & 1) * 8
        for t in range(3 if init else 2):
            d = ('v', sb + 4 * t if t < 2 else SR)
            for sl in range(4):
                s.mfma(d, fr[sl], ('a', RG(u) + (t * 4 + sl) * 4), None if sl else (0 if init else ('v', MB + 4 * t)))
        if init:
            for t in range(3): s.rowmax(sb + 4 * t if t < 2 else SR, t)
            for t in range(2):
                for i in range(4):
                    x = sb + 4 * t + i
                    s.valu(f'v_add_f32 v{x},v{x},v{MB+4*t}', [f'v{x}', f'v{MB+4*t}'], [f'v{x}'])
        for t in range(2):
            x = sb + 4 * t
            for i in range(4): s.exp(x + i)
            d = PB + (n & 1) * 16 + ((kt >> 1) * 2 + t) * 4 + (kt & 1) * 2
            s.cvt(d, x, x + 1); s.cvt(d + 1, x + 2, x + 3)
    def qkr(s, n):
        u = n >> 3
        fr = [s.alloc() for _ in range(4)]
        for sl in range(4): s.r128(fr[sl], vKr + sl, KS[n % 3])
        for sl in range(4): s.mfma(('v', SR), fr[sl], ('a', RG(u) + 32 + sl * 4), None if sl else ('v', MB + 8))
        for i in range(4): s.exp(SR + i)
        s.cvt(PRW, SR, SR + 1); s.cvt(PRW + 1, SR + 2, SR + 3)
        s.p.add(Op('dsw', f'ds_write_b64 v{vPw},v[{PRW}:{PRW+1}] offset:{(n&1)*2048}', [f'v{vPw}'] + regs('v', PRW, 2), [], cost=3))
    def rd_pr(s, n):
        for sg in range(2): s.r128(('a', aPR + 4 * sg), vL16, (n & 1) * 2048 + sg * 1024)
    def pfrag(s, n, sg, t): return ('v', PB + (n & 1) * 16 + (sg * 2 + t) * 4) if t < 2 else ('a', aPR + 4 * sg)
    def pv(s, n, ul):
        fr = []
        for sg in range(2):
            f = s.alloc(); fr.append(f)
            for jj in range(2): s.rtr(f, jj, vV + ul, VS[n % 3] - VS[0] + (2 * sg + jj) * 4096)
        for t in range(3 if ul < 2 else 2):
            for sg in range(2): s.mfma(('v', OA + t * 32 + ul * 4), fr[sg], s.pfrag(n, sg, t), 0 if (n & 7) == 0 and sg == 0 else None)
    def ones(s, n, ts=(2, 0, 1)):
        for t in ts:
            for sg in range(2): s.mfma(('a', aL + 4 * t), ('a', aONE), s.pfrag(n, sg, t), 0 if (n & 7) == 0 and sg == 0 else None)
    def ofin_l(s, u):
        for t in range(3):
            x = TMP + 6 + t
            s.valu(f'v_accvgpr_read_b32 v{x},a{aL+4*t}', [f'a{aL+4*t}'], [f'v{x}'])
            s.valu(f'v_rcp_f32 v{x},v{x}', [f'v{x}'], [f'v{x}'], 'trans', 2)
    def ofin(s, u, pair, t):
        acc = OA + t * 32 + pair * 8; x = TMP + 6 + t
        for i in range(8): s.valu(f'v_mul_f32 v{acc+i},v{x},v{acc+i}', [f'v{acc+i}', f'v{x}'], [f'v{acc+i}'])
        for i in range(4): s.cvt(acc + i, acc + 2 * i, acc + 2 * i + 1)
        for i in range(4): s.awr(RG(u) + (t * 4 + pair) * 4 + i, acc + i)
    def ofin_all(s, u):
        s.ofin_l(u)
        s.ofin(u, 0, 2)
        for pair in range(4):
            for t in range(2): s.ofin(u, pair, t)
    def owr(s, u):
        s.p.add(Op('dsw', f'ds_write_b128 v{vGw},{rr("a",RG(u)+32,4)}', [f'v{vGw}'] + regs('a', RG(u) + 32, 4), [], cost=5))
    def pacc(s, c): return SUM if c == 7 and s.ik else QA if (c & 1) == 0 else OA
    def pp(s, n, nl):
        c, u = n >> 2, n & 3
        acc = s.pacc(c)
        fr = []
        for sl in range(4):
            f = s.alloc(); fr.append(f)
            slot = s.PSL[n % 7]; ar, bs = (vPo, 0) if slot < 65536 else (vPo2, VS[2])
            for jj in range(2): s.rtr(f, jj, ar + nl * 4 + sl, slot - bs + jj * 2048)
        for t in range(3 if nl == 0 else 2):
            d = ('v', acc + t * 16 + nl * 4)
            for sl in range(4): s.mfma(d, fr[sl], ('a', RG(u) + (t * 4 + sl) * 4), 0 if u == 0 and sl == 0 and not (c == 7 and s.ik) else None)
    def pfin(s, c):
        acc = s.pacc(c)
        t_ = s.stemp()
        if s.ik:
            s.salu(f's_mul_i32 s{t_},s{sTC+c},1152', wr=[f's{t_}']); s.salu(f's_add_u32 s{t_},s{t_},s{sHS}', wr=[f's{t_}'])
        else: s.salu(f's_mul_i32 s{t_},s{sTC+c},144', wr=[f's{t_}'])
        pol = s.opt.get('stpol', 'sc1' if s.ik else '').replace('+', ' ')
        for t in range(2):
            for pr in range(2):
                x = acc + t * 16 + pr * 8
                for i in range(4): s.cvt(x + i, x + 2 * i, x + 2 * i + 1)
                s.p.add(Op('store', f'buffer_store_dwordx4 {rr("v",x,4)},v{vSt},s[{sWS}:{sWS+3}],s{t_} offen offset:{(t*2+pr)*1024} {pol}',
                           regs('v', x, 4) + [f'v{vSt}', f's{t_}'], [], cost=5, prio=6 + 5 * (t * 2 + pr)))
        x = acc + 32
        s.cvt(x, x, x + 1); s.cvt(x + 1, x + 2, x + 3)
        s.p.add(Op('store', f'buffer_store_dwordx2 {rr("v",x,2)},v{vSt+1},s[{sWS}:{sWS+3}],s{t_} offen {pol}',
                   regs('v', x, 2) + [f'v{vSt+1}', f's{t_}'], [f'#st{c}'], cost=3, prio=26))
    def here(s, o):
        if s.lastm is not None: s.p.edge(s.lastm, o)
        return o
    def flagset(s, c):
        s.here(s.p.add(Op('store', f'buffer_store_dword v{vOne},v{vZ},s[{sFL}:{sFL+3}],s{sFO} offen offset:{c*128} sc1',
                          [f'v{vOne}', f'v{vZ}', f'#st{c}'], [], cost=2, prio=1)))
    def spin(s, name, ld, cmp):
        s.ool += [f'L_sp{name}:', f's_mov_b32 s{sSPIN},0x40000', f'L_sq{name}:', ld, 's_waitcnt vmcnt(0)'] + cmp + [
                  f's_cbranch_vccnz L_rt{name}', f's_sub_u32 s{sSPIN},s{sSPIN},1', f's_cmp_lg_u32 s{sSPIN},0',
                  f's_cbranch_scc1 L_sq{name}', f's_branch L_rt{name}']
    def poll(s, c):
        t = 90 + (c & 1) if not s.opt.get('stamp') else 4 + 3 * (c & 1)
        s.salu(f's_sub_u32 s3,s5,{c+1}', wr=['s3']); s.salu('s_and_b32 s3,s3,7', wr=['s3'])
        s.salu(f's_lshl_b32 s3,s3,12', wr=['s3']); s.salu(f's_add_u32 s{t},s3,s{sW1K}', wr=[f's{t}'])
        ld = f'buffer_load_dword v{vF+(c&1)},off,s[{sFL}:{sFL+3}],s{t} offset:{c*128} sc1'
        s.here(s.p.add(Op('load', ld, [f's{t}'], [f'v{vF+(c&1)}'])))
        s.spin(f'{c}', ld, [f'v_cmp_eq_u32 vcc,1,v{vF+(c&1)}'])
        s.pt = t
    def check(s, c):
        t = 90 + (c & 1) if not s.opt.get('stamp') else 4 + 3 * (c & 1)
        ck = s.here(s.valu(f'v_cmp_eq_u32 vcc,1,v{vF+(c&1)}\ns_cbranch_vccz L_sp{c}\nL_rt{c}:', [f'v{vF+(c&1)}', f's{t}', '#mk'], ['vcc', f'v{vF+(c&1)}'], cost=2, prio=1))
        t2 = s.stemp()
        s.salu(f's_sub_u32 s3,s5,{c+1}', wr=['s3']); s.salu('s_and_b32 s3,s3,7', wr=['s3'])
        s.salu(f's_mul_i32 s3,s3,18432', wr=['s3']); s.salu(f's_add_u32 s{t2},s3,s{sHD}', wr=[f's{t2}'])
        L = LAND(c)
        for q in range(5):
            n = 4 if q < 4 else 2
            o = s.p.add(Op('load', f'buffer_load_dwordx{n} {rr("v",L+4*q,n)},v{vSt+(q>>2)},s[{sWS}:{sWS+3}],s{t2} offen offset:{(q&3)*1024} {s.opt.get("ldpol","sc1").replace("+"," ")}',
                           [f'v{vSt+(q>>2)}', f's{t2}'], regs('v', L + 4 * q, n)))
            s.p.edge(ck, o, states=1)
    def addp(s, c):
        L = LAND(c); V = lambda x: f'v{x}'
        for i in range(18):
            x = L + i; d = SUM + 2 * i
            if c == 0:
                s.here(s.valu(f'v_lshlrev_b32 v{d},16,v{x}', [V(x)], [V(d)])); s.here(s.valu(f'v_and_b32 v{d+1},0xffff0000,v{x}', [V(x)], [V(d + 1)]))
            else:
                y = L + 18 + (i & 1)
                s.here(s.valu(f'v_lshlrev_b32 v{y},16,v{x}', [V(x)], [V(y)])); s.valu(f'v_add_f32 v{d},v{d},v{y}', [V(d), V(y)], [V(d)])
                s.here(s.valu(f'v_and_b32 v{x},0xffff0000,v{x}', [V(x)], [V(x)])); s.valu(f'v_add_f32 v{d+1},v{d+1},v{x}', [V(d + 1), V(x)], [V(d + 1)])
    def outfin(s):
        for q in range(4):
            x = SUM + q * 8
            for i in range(4): s.cvt(x + i, x + 2 * i, x + 2 * i + 1)
            s.swap(16, x, x + 2); s.swap(16, x + 1, x + 3)
            s.p.add(Op('store', f'buffer_store_dwordx4 {rr("v",x,4)},v{vOut+(q&1)},s[{sOUT}:{sOUT+3}],{"s%d"%(sTMP+9) if q>>1 else 0} offen',
                       regs('v', x, 4) + [f'v{vOut+(q&1)}', f's{sTMP+9}'], [], cost=5))
        x = SUM + 32
        s.cvt(x, x, x + 1); s.cvt(x + 1, x + 2, x + 3)
        s.p.add(Op('store', f'buffer_store_dwordx2 {rr("v",x,2)},v{vOut+2},s[{sOUT}:{sOUT+3}],0 offen', regs('v', x, 2) + [f'v{vOut+2}'], [], cost=3))
    def paddr(s):
        V = lambda x: f'v{x}'
        a, b = vW + 2, vW + 3
        def op(t, rd, wr): s.valu(t, [V(x) for x in rd], [V(x) for x in wr])
        op(f'v_subrev_u32 v{a},{PR},v{vL16}', [vL16], [a])
        op(f'v_mov_b32 v{b},s{sW}', [], [b])
        op(f'v_mul_u32_u24 v{b},4608,v{b}', [b], [b])
        op(f'v_add_u32 v{vSt},v{a},v{b}', [a, b], [vSt])
        op(f'v_lshrrev_b32 v{vSt+1},1,v{a}', [a], [vSt + 1])
        op(f'v_add_u32 v{vSt+1},v{vSt+1},v{b}', [vSt + 1, b], [vSt + 1]); op(f'v_add_u32 v{vSt+1},4096,v{vSt+1}', [vSt + 1], [vSt + 1])
        c, d = vW + 4, vW + 5
        op(f'v_lshrrev_b32 v{b},6,v{a}', [a], [b])
        op(f'v_bfe_u32 v{c},v{a},5,1', [a], [c])
        op(f'v_lshl_add_u32 v{c},s{sW},1,v{c}', [c], [c])
        op(f'v_and_b32 v{d},6,v{b}', [b], [d])
        op(f'v_xor_b32 v{c},v{c},v{d}', [c, d], [c])
        op(f'v_lshlrev_b32 v{c},4,v{c}', [c], [c])
        op(f'v_lshl_add_u32 v{c},v{b},7,v{c}', [b, c], [c])
        op(f'v_bfe_u32 v{d},v{a},4,1', [a], [d])
        op(f'v_lshl_add_u32 v{c},v{d},3,v{c}', [c, d], [c])
        op(f'v_add_u32 v{vPo},s{sW4K},v{c}', [c], [vPo])
        if s.ik:
            e = vW + 7
            op(f'v_bfe_u32 v{b},v{a},4,4', [a], [b]); op(f'v_lshrrev_b32 v{d},8,v{a}', [a], [d])
            op(f'v_mov_b32 v{e},v{a}', [a], [e])
            op(f'v_lshlrev_b32 v{b},11,v{b}', [b], [b])
            op(f'v_lshlrev_b32 v{c},3,v{d}', [d], [c]); op(f'v_lshl_add_u32 v{c},s{sW},5,v{c}', [c], [c])
            op(f'v_add_u32 v{c},v{c},v{b}', [b, c], [c]); op(f'v_add_u32 v{c},262144,v{c}', [c], [c])
            op(f'v_lshl_add_u32 v{b},s{sW},16,v{b}', [b], [b])
            op(f'v_lshrrev_b32 v{a},1,v{d}', [d], [a]); op(f'v_lshl_add_u32 v{b},v{a},4,v{b}', [a, b], [b])
            op(f'v_and_b32 v{d},1,v{d}', [d], [d]); op(f'v_xor_b32 v{d},s{sW},v{d}', [d], [d])
            op(f'v_lshl_add_u32 v{a},v{d},5,v{b}', [d, b], [a])
            op(f'v_xor_b32 v{b},64,v{a}', [a], [b])
            op(f'v_lshlrev_b32 v{vZ},20,v{e}', [e], [vZ])
            op(f'v_mov_b32 v{vOne},1', [], [vOne])
            s.salu(f's_mov_b32 s{sTMP+9},32768', wr=[f's{sTMP+9}'])
        for nl in range(4):
            for sl in range(4):
                if nl or sl: op(f'v_xor_b32 v{vPo+nl*4+sl},{nl*32+sl*4096},v{vPo}', [vPo], [vPo + nl * 4 + sl])

    def build(s):
        base = [('a', aPOOL + 4 * i) for i in range(10)]
        A = lambda a, n: [('a', a + 4 * i) for i in range(n)]
        Vq = lambda a, n: [('v', a + 4 * i) for i in range(n)]
        s.pool = base + A(RG(3), 12)
        s.ld_x(0); s.ld_w(0, None); s.ld_xr(0, None); s.ld_x(1); s.ld_w(1, None); s.ld_x(2)
        nb = int(s.opt.get('nb', 2))
        if nb == 0: last0 = s.p.last_vm
        s.ld_w(2, None); s.ld_xr(1, None)
        if nb == 1: last0 = s.p.last_vm
        s.ld_x(3)
        if nb == 2: last0 = s.p.last_vm
        for D in range(8):
            b = s.bar([f'W{D}', f'X{D}', f'xr{D>>1}'], 'touch0' if D == 0 else None)
            if D == 0: s.p.edge(last0, b)
            s.rd_x(D)
            if D in (2, 4, 6): s.ld_xr(D // 2 + 1, b)
            if D >= 1: s.ld_w(D + 2, b)
            if D <= 4: s.ld_x(D + 4)
            if D == 4:
                s.salu('s_mul_i32 s3,s2,%s' % s.opt.get('hash', '0x9e3779b1'), wr=['s3']); s.salu('s_lshr_b32 s3,s3,29', wr=['s3'])
                for k in range(8):
                    s.salu(f's_add_u32 s7,s3,{k}'); s.salu('s_and_b32 s7,s7,7'); s.salu(f's_lshl_b32 s{sT+k},s7,14')
            if D == 5: s.ld_kv('K', 0, None)
            if D == 6: s.ld_kv('K', 1, None); s.ld_kv('V', 0, None, VS[0])
            if D == 7: s.ld_kv('K', 2, None, KS[2]); s.ld_kv('V', 1, None, VS[1])
            s.tagnext = f'Q0.{D}'
            for ul in range(8):
                s.qp(D, ul)
                if D == 7 and ul == 1: s.qfin(0, 0, 2)
                if D == 7 and ul & 1:
                    for t in range(2): s.qfin(0, ul >> 1, t)
        s.p.DMAGAP = float(s.opt.get('GAP2', 100))
        for J in range(32):
            u, j = J >> 3, J & 7
            m = J + 8; hasq = u < 3
            if u == 0: s.pool = base + A(RG(3), 12)
            elif u == 1: s.pool = base + A(RG(3), 12)
            elif u == 2: s.pool = base + A(RG(0) + 36, 3) + A(RG(1) + 36, 3) + (A(RG(3), 6) if j < 7 else [])
            else: s.pool = base + (Vq(QA + 36, 5) if j else []) + (A(RG(0) + 36, 3) + A(RG(1) + 36, 3) if j == 0 else Vq(QA, 9) if j < 7 else [])
            tiles = [f'K{J}'] + ([f'V{J-1}'] if J else []) + ([f'W{m}', f'X{m}', f'xr{m>>1}'] if hasq else [])
            b = s.bar(tiles, f'touchJ{J}')
            if j == 0: s.gather(u, 0)
            if u == 3 and j in (3, 5, 7): s.gather((j - 3) // 2, 1)
            if hasq: s.rd_x(m)
            if m + 1 < 32:
                if J: s.ld_w(m + 1, b)
                s.ld_x(m + 1)
                if m % 2 == 0 and m + 2 < 32: s.ld_xr(m // 2 + 1, b)
            if J >= 1 and J + 2 < 32: s.ld_kv('K', J + 2, b)
            if J >= 1 and J + 1 < 32: s.ld_kv('V', J + 1, b)
            if J == 26:
                for k in range(8):
                    s.salu(f's_add_u32 s7,s{5 if s.ik else 6},{k+1}'); s.salu('s_and_b32 s7,s7,7'); s.salu(f's_lshl_b32 s{sTC+k},s7,7')
            for n in {27: [0], 28: [4], 29: [5], 30: [1], 31: [2, 6]}.get(J, []): s.ld_wo(n, b)
            if u == 3 and j == 2: s.paddr()
            if s.ik and J == 2:
                s.valu(f'v_subrev_u32 v{TMP+6},{GB},v{vGw}', [f'v{vGw}'], [f'v{TMP+6}']); s.valu(f'v_lshlrev_b32 v{TMP+6},4,v{TMP+6}', [f'v{TMP+6}'], [f'v{TMP+6}'])
                s.valu(f'v_mov_b32 v{TMP+7},1', [], [f'v{TMP+7}'])
                s.p.edge(b, s.p.add(Op('store', f'buffer_store_byte v{TMP+7},v{TMP+6},s[{sDBG}:{sDBG+3}],s5 offen sc1', [f'v{TMP+6}', f'v{TMP+7}'], [], cost=2, prio=100)))
            if s.ik and J == 27:
                mk = f'buffer_load_dwordx2 v[{vF}:{vF+1}],off,s[{sDBG}:{sDBG+3}],0 sc1'
                s.p.add(Op('load', mk, [], regs('v', vF, 2)))
            if s.ik and J == 30:
                cm = [f'v_and_b32 v{vF},v{vF},v{vF+1}', f'v_cmp_eq_u32 vcc,0x01010101,v{vF}']
                s.p.edge(b, s.valu('\n'.join(cm) + '\ns_cbranch_vccz L_spm\nL_rtm:', regs('v', vF, 2), ['vcc', '#mk'] + regs('v', vF, 2), cost=3, prio=20))
                s.spin('m', mk, cm)
            if u == 3 and j in (2, 4, 6): s.owr((j - 2) // 2)
            QP = (lambda ul: s.qp(m, ul)) if hasq else (lambda ul: None)
            def QF(ul):
                if hasq and j == 7:
                    if ul == 1: s.qfin(u + 1, 0, 2)
                    if ul == 7: s.qfin(u + 1, 2, 1)
                    if ul & 1:
                        for t in range(1 if ul == 5 else 2): s.qfin(u + 1, ul >> 1, t)
            PV = (lambda ul: s.pv(J - 1, ul)) if J else (lambda ul: None)
            s.tagnext = f'I{J}'
            if j == 0:
                if J:
                    s.rd_pr(J - 1)
                    for ul in (2, 3, 4, 5, 6, 7, 0, 1): PV(ul)
                    s.ones(J - 1)
                else:
                    for ul in range(4): QP(ul)
                s.qk(J, 0)
                if J:
                    s.ofin_all(u - 1)
                    for ul in range(4): QP(ul)
                else:
                    QP(4); QP(5)
                s.qkr(J); s.qk(J, 1)
                if J: QP(4); QP(5)
                else: QP(6)
                s.qk(J, 2)
                if J: QP(6)
                QP(7)
                s.qk(J, 3)
            elif hasq:
                s.qkr(J); s.qk(J, 0)
                for ul in range(4): QP(ul); QF(ul)
                s.qk(J, 1)
                s.rd_pr(J - 1)
                for ul in range(4, 8): QP(ul); QF(ul)
                PV(0)
                s.qk(J, 2)
                for ul in range(1, 5): PV(ul)
                s.qk(J, 3)
                for ul in range(5, 8): PV(ul)
                s.ones(J - 1)
            else:
                s.qkr(J); s.qk(J, 0)
                s.rd_pr(J - 1)
                for ul in (2, 3): PV(ul)
                s.qk(J, 1)
                for ul in (4, 5, 6): PV(ul)
                s.qk(J, 2)
                for ul in (0, 1): PV(ul)
                s.qk(J, 3)
                PV(7)
                s.ones(J - 1)
        s.p.DMAGAP = float(s.opt.get('GAP3', 64))
        s.pool = base + Vq(QA + 36, 5)
        b = s.bar(['V31', 'O0', 'O1'], 'touchJ32')
        s.ld_wo(3, b)
        s.rd_pr(31)
        s.tagnext = 'I32'
        s.pp(0, 0); s.pp(0, 1)
        for ul in (0, 1): s.pv(31, ul)
        s.ones(31)
        for ul in range(2, 8): s.pv(31, ul)
        s.ofin_all(3)
        s.pp(0, 2); s.pp(0, 3)
        for n in range(1, 32):
            c, u = n >> 2, n & 3
            if n == 2: s.pool = base + Vq(QA + 36, 5) + (A(aONE, 6) if s.ik else Vq(SB, 13))
            prev = b
            if n < 31: b = s.bar([f'O{n+1}'], f'touchP{n}')
            s.p.ds_after = None
            if n == 1:
                s.owr(3)
                for k in range(16): s.valu(f'v_add_u32 v{vPo2+k},{VS[2]},v{vPo+k}', [f'v{vPo+k}'], [f'v{vPo2+k}'])
            if n == 2: s.gather(3, 1)
            s.p.ds_after = prev
            s.tagnext = f'P{n}'
            if u == 0: s.pfin(c - 1)
            if s.ik:
                fs, po, ch, ad = [int(x) for x in s.opt.get('xt', '7,9,11,14').split(',')]
                for k in range(7):
                    if n == min(4 * k + fs, int(s.opt.get('fs6', 31))): s.flagset(k)
                for k in range(7):
                    if n == 4 * k + ch: s.check(k)
                    if n == 4 * k + po: s.poll(k)
                    if n == 4 * k + ad and n < 28: s.addp(k)
            if n + 6 < 32: s.ld_wo(n + 6, b)
            for nl in ((1, 2, 3, 0) if n == 3 else range(4)): s.pp(n, nl)
        if s.ik:
            s.p.DMAGAP = 0
            assert ch - po <= 7
            pend = [k for k in range(7) if 4 * k + po > 31]
            while pend and 4 * (pend[0] - 2) + ch <= 31: s.poll(pend.pop(0))
            for k in range(7):
                if 4 * k + ch > 31:
                    s.lastm = s.p.ops[-1]; s.check(k); s.lastm = s.p.ops[-1]
                    if pend and pend[0] == k + 2: s.poll(pend.pop(0))
                if 4 * k + ad >= 28: s.addp(k)
            s.outfin()
        else: s.pfin(7)
        if s.opt.get('stamp') == '2': s.p.stampset = set('touch' + x for x in '0 J0 J1 J2 J7 J10 J15 J18 J23 J26 J32 P5 P29'.split())
        if s.opt.get('stamp') == '3': s.p.stampset = set(['touchJ32'] + [f'touchP{n}' for n in range(31)])
        for k in ('DSSPACE', 'TTMARGIN', 'SAFE'):
            if k in s.opt: setattr(s.p, k, float(s.opt[k]))
        return s.p.schedule(stamp=(TMP if s.opt.get('stamp') else None))

MACROS = """.macro M d,a,b,c
v_mfma_f32_16x16x32_bf16 \\d,\\a,\\b,\\c
.endm
.macro T d,a,o
ds_read_b64_tr_b16 \\d,\\a offset:\\o
.endm
.macro R d,a,o
ds_read_b128 \\d,\\a offset:\\o
.endm
.macro E d
v_exp_f32_e64 \\d,\\d
.endm
.macro C d,a,b
v_cvt_pk_bf16_f32 \\d,\\a,\\b
.endm
.macro D v,r,s,o
buffer_load_dwordx4 \\v,\\r,\\s offen offset:\\o lds
.endm
.macro Dn v,r,s,o
buffer_load_dwordx4 \\v,\\r,\\s offen offset:\\o nt lds
.endm
"""

def setup_entry(opt):
    L = []; a = L.append
    a('s_cmp_ge_u32 s2,256'); a('s_cbranch_scc0 L_go'); a('s_endpgm'); a('L_go:')
    if opt.get('stamp'): a('s_memtime s[60:61]'); a('s_memrealtime s[90:91]')
    a('s_load_dwordx16 s[64:79],s[0:1],0')
    a('s_load_dwordx8 s[80:87],s[0:1],64')
    a('s_load_dwordx2 s[88:89],s[0:1],96')
    a('s_getpc_b64 s[48:49]'); a('s_bfe_u32 s3,s2,0x20003'); a('s_lshl_b32 s3,s3,15')
    a('v_lshl_add_u32 v1,v0,7,s3'); a('v_min_u32 v1,L_end0-L_go-64,v1'); a(f'global_load_dword v{PRW},v1,s[48:49]')
    a('s_branch L_main')
    return L

def setup_main(opt):
    L = []; a = L.append
    a('s_and_b32 s3,s2,7'); a('s_lshr_b32 s4,s3,2')
    if opt.get('map', 'a') == 'a':
        a('s_and_b32 s3,s3,3'); a('s_lshl_b32 s3,s3,1'); a('s_bfe_u32 s5,s2,0x10003'); a('s_or_b32 s5,s5,s3')
        a('s_lshr_b32 s6,s2,4')
    else:
        a('s_bfe_u32 s3,s2,0x10001'); a('s_lshl_b32 s3,s3,2'); a('s_bfe_u32 s5,s2,0x20003'); a('s_or_b32 s5,s5,s3')
        a('s_and_b32 s3,s2,1'); a('s_lshl_b32 s3,s3,3'); a('s_lshr_b32 s6,s2,5'); a('s_or_b32 s6,s6,s3')
    a('v_lshrrev_b32 v1,6,v0'); a('v_and_b32 v0,63,v0'); a(f's_mov_b32 s{sFLAG},0'); a(f'v_readfirstlane_b32 s{sW},v1')
    a('v_and_b32 v2,15,v0')
    a('v_lshrrev_b32 v3,4,v0')
    a('v_lshrrev_b32 v4,3,v0')
    a('v_and_b32 v5,7,v0'); a('v_and_b32 v6,6,v4'); a('v_xor_b32 v5,v5,v6'); a('v_lshlrev_b32 v5,4,v5')
    a(f's_lshl_b32 s{sW4K},s{sW},12'); a(f's_lshl_b32 s{sW1K},s{sW},10'); a(f's_mov_b32 s{sTMP+9},4096'); a(f's_mov_b32 s{sCS},{CSCALE:#x}')
    a('v_lshl_add_u32 v5,v4,10,v5')
    a(f'v_lshl_add_u32 v{vDX},v1,15,v5')
    a('v_and_b32 v6,1,v1'); a('v_lshrrev_b32 v7,1,v1')
    a('v_lshl_add_u32 v5,v6,13,v5'); a('v_lshl_add_u32 v5,v7,7,v5'); a(f'v_add_u32 v{vDXr},131072,v5')
    a('v_lshlrev_b32 v8,1,v3'); a('v_xor_b32 v8,v2,v8')
    a('v_lshlrev_b32 v9,4,v8'); a('v_lshl_add_u32 v9,v3,8,v9'); a(f'v_lshl_add_u32 v{vDK},v1,12,v9'); a(f'v_xor_b32 v{vDK+1},128,v{vDK}')
    a('v_and_b32 v9,12,v8'); a('v_bfe_u32 v10,v8,1,1'); a('v_or_b32 v9,v9,v10'); a('v_and_b32 v10,1,v8'); a('v_lshl_or_b32 v9,v10,1,v9')
    a('v_lshlrev_b32 v9,4,v9')
    a('v_lshl_add_u32 v10,v6,2,v3'); a('v_lshl_add_u32 v10,v7,5,v10')
    a(f'v_lshl_add_u32 v{vDW},v10,13,v9'); a(f'v_xor_b32 v{vDW+1},128,v{vDW}'); a(f'v_add_u32 v{vDW+1},64512,v{vDW+1}')
    if opt.get('rotq', 'b') == 'b': a('s_and_b32 s3,s6,3')
    elif opt['rotq'] == 'bh': a('s_lshl_b32 s3,s5,1'); a('s_add_u32 s3,s3,s6'); a('s_and_b32 s3,s3,3')
    elif opt['rotq'] == 'bh1': a('s_add_u32 s3,s5,s6'); a('s_and_b32 s3,s3,3')
    else: a('s_mov_b32 s3,0')
    a('s_lshl_b32 s3,s3,8')
    for D in range(8):
        a(f's_and_b32 s{sTX+D},s3,0x380'); a(f's_lshl_b32 s{sTW+D},s{sTX+D},12')
        if D < 7: a('s_add_u32 s3,s3,128')
    for d, n in ((sX, 147456), (sK, 524288), (sV, 524288), (sWo, 524288), (sWS, 147456)): a(f's_mov_b32 s{d+2},{n}')
    for d in (sX, sK, sV, sWq, sWo, sWS): a(f's_mov_b32 s{d+3},0x20000')
    a(f's_mul_i32 s{sTMP},s6,147456')
    a('s_lshl_b32 s7,s6,3'); a('s_add_u32 s7,s7,s5'); a(f's_lshl_b32 s{sTMP+1},s7,19' if not opt.get('nohbm') else f's_mov_b32 s{sTMP+1},0')
    a(f's_lshl_b32 s{sTMP+2},s5,10'); a(f's_sub_u32 s{sWq+2},4194304,s{sTMP+2}')
    a(f's_lshl_b32 s{sTMP+3},s5,19')
    a('s_lshl_b32 s3,s4,7'); a('s_add_u32 s7,s7,s3'); a('s_mul_i32 s7,s7,147456')
    a('s_cmp_eq_u32 s4,0')
    a('s_waitcnt lgkmcnt(0)')
    for d, x, y in ((sX, 64, 74), (sK, 66, 76), (sV, 68, 78), (sWq, 70, 80), (sWo, 72, 82)):
        a(f's_cselect_b64 s[{d}:{d+1}],s[{x}:{x+1}],s[{y}:{y+1}]')
    def adv(d, off): a(f's_add_u32 s{d},s{d},s{off}'); a(f's_addc_u32 s{d+1},s{d+1},0')
    adv(sX, sTMP); adv(sWq, sTMP + 2); adv(sK, sTMP + 1); adv(sV, sTMP + 1); adv(sWo, sTMP + 3)
    if opt.get('ik', '1') != '1':
        a(f's_add_u32 s{sWS},s88,s7'); a(f's_addc_u32 s{sWS+1},s89,0')
        return L
    a('s_lshl_b32 s3,s4,4'); a('s_add_u32 s3,s3,s6')
    a('s_mul_i32 s7,s3,1179648'); a(f's_add_u32 s{sWS},s88,s7'); a(f's_addc_u32 s{sWS+1},s89,0'); a(f's_mov_b32 s{sWS+2},1179648')
    a('s_lshl_b32 s7,s3,15'); a(f's_add_u32 s7,s7,{FLOFF}'); a(f's_add_u32 s{sFL},s88,s7'); a(f's_addc_u32 s{sFL+1},s89,0')
    a(f's_mov_b32 s{sFL+2},32768'); a(f's_mov_b32 s{sFL+3},0x20000')
    a('s_mul_i32 s7,s6,294912'); a(f's_lshl_b32 s{sTMP},s4,10'); a(f's_add_u32 s7,s7,s{sTMP}'); a(f's_lshl_b32 s{sTMP},s5,7'); a(f's_add_u32 s7,s7,s{sTMP}')
    a(f's_add_u32 s{sOUT},s84,s7'); a(f's_addc_u32 s{sOUT+1},s85,0'); a(f's_mov_b32 s{sOUT+2},{143*2048+128}'); a(f's_mov_b32 s{sOUT+3},0x20000')
    a('s_lshl_b32 s7,s3,3'); a(f's_add_u32 s{sDBG},s86,s7'); a(f's_addc_u32 s{sDBG+1},s87,0'); a(f's_mov_b32 s{sDBG+2},16'); a(f's_mov_b32 s{sDBG+3},0x20000')
    a(f's_mul_i32 s{sHS},s5,18432'); a(f's_mul_i32 s{sHD},s5,147456')
    a(f's_lshl_b32 s{sFO},s5,12'); a(f's_add_u32 s{sFO},s{sFO},s{sW1K}')
    a('v_lshlrev_b32 v16,7,v0'); a('v_lshrrev_b32 v17,3,v0'); a('v_lshl_add_u32 v16,v17,20,v16'); a('v_mov_b32 v17,0')
    a(f'buffer_store_dword v17,v16,s[{sFL}:{sFL+3}],s{sFO} offen sc1')
    return L

def sizes(lines):
    import subprocess, re
    src = '.amdgcn_target "amdgcn-amd-amdhsa--gfx950"\n.text\n' + MACROS + '\n'.join(l for l in lines if l[0] != '@') + '\n'
    open('_sz.s', 'w').write(src)
    subprocess.run(['clang', '-x', 'assembler', '-target', 'amdgcn-amd-amdhsa', '-mcpu=gfx950', '-c', '_sz.s', '-o', '_sz.o'], check=True)
    d = subprocess.run(['llvm-objdump', '-d', '--mcpu=gfx950', '_sz.o'], capture_output=True, text=True).stdout
    sz = [4 * len(m.group(1).split()) for m in re.finditer(r'// [0-9A-F]+: ([0-9A-F ]+)', d)]
    it = iter(sz)
    return [0 if (l[0] == '@' or l.endswith(':')) else next(it) for l in lines]

def paginate(lines, plan, ool):
    sz = sizes(lines + ool)[:len(lines)]
    total = sum(sz); npages = (total + 1200) // 4096
    out = []; pos = 0; back = {}; nxt = 1; done = set()
    for k, (l, z) in enumerate(zip(lines, sz)):
        if l[0] == '@':
            r = plan.get(l[1:], 0)
            nxt = max(nxt, pos // 4096 + 1)
            if r and nxt <= npages:
                out.append(f's_mov_b32 s{sFLAG},1'); pos += 4
                for j in range(r):
                    lab = f'L_bk{l[1:]}_{j}'
                    for w in range(4):
                        if nxt > npages: break
                        out += [f's_cmp_eq_u32 s{sW},{w}', f's_cbranch_scc1 L_pg{nxt}']; pos += 8
                        back[nxt] = lab; nxt += 1
                    out.append(lab + ':')
                out.append(f's_mov_b32 s{sFLAG},0'); pos += 4
            continue
        out.append(l); pos += z
        pg = pos // 4096
        if pg in back and pg not in done and (l[:2] == 'M ' or pos % 4096 >= 40) and not l.startswith(('s_add_u32 s', 's_cmp', 'v_cmp')):
            assert pos % 4096 <= 56
            out += [f'L_pg{pg}:', f's_cmp_eq_u32 s{sFLAG},1', f's_cbranch_scc1 {back[pg]}']; pos += 8; done.add(pg)
    for pg in back:
        if pg not in done: out += [f'L_pg{pg}:', f's_cmp_eq_u32 s{sFLAG},1', f's_cbranch_scc1 {back[pg]}']
    return out

def setup_late(g):
    V = lambda x: f'v{x}'
    def op(t, rd, wr): g.valu(t, [V(x) for x in rd], [V(x) for x in wr])
    op('v_and_b32 v8,6,v2', [2], [8]); op('v_xor_b32 v8,v3,v8', [3, 8], [8]); op('v_lshlrev_b32 v8,4,v8', [8], [8])
    op('v_lshl_add_u32 v8,v2,7,v8', [2, 8], [8])
    op(f'v_add_u32 v{vXr},{XR},v8', [8], [vXr]); op(f'v_xor_b32 v{vXr+1},64,v{vXr}', [vXr], [vXr + 1])
    op('v_lshl_add_u32 v8,v1,12,v8', [1, 8], [8])
    op(f'v_add_u32 v{vX},{XWIN},v8', [8], [vX]); op(f'v_xor_b32 v{vX+1},64,v{vX}', [vX], [vX + 1])
    op('v_lshrrev_b32 v9,2,v0', [0], [9])
    op('v_bfe_u32 v10,v0,1,1', [0], [10]); op('v_lshl_add_u32 v10,v1,2,v10', [1, 10], [10])
    op('v_and_b32 v11,7,v9', [9], [11]); op('v_lshlrev_b32 v11,1,v11', [11], [11]); op('v_xor_b32 v10,v10,v11', [10, 11], [10])
    op('v_lshlrev_b32 v10,4,v10', [10], [10]); op('v_lshl_add_u32 v10,v9,8,v10', [9, 10], [10])
    op('v_and_b32 v11,1,v0', [0], [11]); op('v_lshl_add_u32 v10,v11,3,v10', [10, 11], [10])
    op(f'v_add_u32 v{vV},{VS[0]},v10', [10], [vV]); op(f'v_add_u32 v{vW},{WS_[0]},v10', [10], [vW])
    for ul in range(1, 8):
        op(f'v_xor_b32 v{vW+ul},{ul*32},v{vW}', [vW], [vW + ul]); op(f'v_xor_b32 v{vV+ul},{ul*32},v{vV}', [vV], [vV + ul])
    op('v_lshl_add_u32 v12,v1,2,v3', [1, 3], [12]); op('v_and_b32 v13,7,v2', [2], [13]); op('v_lshlrev_b32 v13,1,v13', [13], [13])
    op('v_xor_b32 v12,v12,v13', [12, 13], [12]); op('v_lshlrev_b32 v12,4,v12', [12], [12])
    op(f'v_lshl_add_u32 v{vK},v2,8,v12', [2, 12], [vK]); op(f'v_lshl_add_u32 v{vKr},v1,12,v{vK}', [1, vK], [vKr])
    for sl in range(1, 4):
        op(f'v_xor_b32 v{vK+sl},{sl*64},v{vK}', [vK], [vK + sl]); op(f'v_xor_b32 v{vKr+sl},{sl*64},v{vKr}', [vKr], [vKr + sl])
    op('v_lshlrev_b32 v14,4,v0', [0], [14]); op(f'v_add_u32 v{vL16},{PR},v14', [14], [vL16])
    op(f'v_lshl_add_u32 v15,v7,10,v{vL16}', [7, vL16], [15]); op(f'v_lshl_add_u32 v{vPw},v6,3,v15', [6, 15], [vPw])
    op('v_lshl_add_u32 v14,v1,10,v14', [1, 14], [14]); op(f'v_add_u32 v{vGw},{GB},v14', [14], [vGw])
    op('v_mov_b32 v15,0x3f803f80', [], [15])
    for i in range(4): g.awr(aONE + i, 15)

def reduce_kernel():
    L = []; a = L.append
    a('s_cmp_ge_u32 s2,256'); a('s_cbranch_scc1 L_exit1')
    a('s_load_dwordx2 s[4:5],s[0:1],80'); a('s_load_dwordx2 s[6:7],s[0:1],96')
    a('s_lshr_b32 s3,s2,3'); a('s_and_b32 s16,s2,7')
    a('v_lshrrev_b32 v1,6,v0'); a('v_and_b32 v0,63,v0')
    a('v_mul_u32_u24 v2,4608,v1'); a('v_lshl_add_u32 v3,v0,4,v2'); a('v_lshl_add_u32 v4,v0,3,v2'); a('v_add_u32 v4,4096,v4')
    a('s_mul_i32 s17,s3,1179648'); a('s_mul_i32 s18,s16,18432'); a('s_add_u32 s17,s17,s18')
    a('s_waitcnt lgkmcnt(0)')
    a('s_add_u32 s8,s6,s17'); a('s_addc_u32 s9,s7,0'); a('s_mov_b32 s10,1050624'); a('s_mov_b32 s11,0x20000')
    a('s_mov_b32 s19,0')
    for h in range(8):
        for q in range(4): a(f'buffer_load_dwordx4 v[{64+h*20+q*4}:{67+h*20+q*4}],v3,s[8:11],s19 offen offset:{q*1024}')
        a(f'buffer_load_dwordx2 v[{80+h*20}:{81+h*20}],v4,s[8:11],s19 offen')
        a('s_add_u32 s19,s19,147456')
    a('s_and_b32 s20,s3,15'); a('s_mul_i32 s20,s20,294912'); a('s_lshr_b32 s21,s3,4'); a('s_lshl_b32 s21,s21,10'); a('s_add_u32 s20,s20,s21')
    a('s_lshl_b32 s21,s16,7'); a('s_add_u32 s20,s20,s21')
    a('s_mov_b32 s12,s4'); a('s_mov_b32 s13,s5'); a('s_mov_b32 s14,4718592'); a('s_mov_b32 s15,0x20000')
    a('v_and_b32 v5,15,v0'); a('v_lshrrev_b32 v6,4,v0')
    a('v_lshl_add_u32 v7,v1,5,v5'); a('v_lshlrev_b32 v7,11,v7')
    a('v_and_b32 v8,1,v6'); a('v_xor_b32 v8,v8,v1'); a('v_lshl_add_u32 v7,v8,5,v7'); a('v_lshrrev_b32 v8,1,v6'); a('v_lshl_add_u32 v7,v8,4,v7')
    a('v_xor_b32 v9,64,v7')
    a('v_add_u32 v10,128,v5'); a('v_lshlrev_b32 v10,11,v10'); a('v_lshl_add_u32 v10,v1,5,v10'); a('v_lshl_add_u32 v10,v6,3,v10')
    for h in range(8):
        a(f's_waitcnt vmcnt({(7-h)*5})')
        for i in range(18):
            x = 64 + h * 20 + i
            if h == 0:
                a(f'v_lshlrev_b32 v{16+2*i},16,v{x}'); a(f'v_and_b32 v{17+2*i},0xffff0000,v{x}')
            else:
                a(f'v_lshlrev_b32 v11,16,v{x}'); a(f'v_and_b32 v{x},0xffff0000,v{x}')
                a(f'v_add_f32 v{16+2*i},v{16+2*i},v11'); a(f'v_add_f32 v{17+2*i},v{17+2*i},v{x}')
    for i in range(18): a(f'C v{64+i},v{16+2*i},v{17+2*i}')
    a('s_nop 1')
    for q in range(4):
        a(f'v_permlane16_swap_b32 v{64+q*4},v{66+q*4}'); a(f'v_permlane16_swap_b32 v{65+q*4},v{67+q*4}')
    a('s_add_u32 s21,s20,32768')
    for q in range(4):
        a(f'buffer_store_dwordx4 v[{64+q*4}:{67+q*4}],v{9 if q&1 else 7},s[12:15],s{21 if q>>1 else 20} offen')
    a('buffer_store_dwordx2 v[80:81],v10,s[12:15],s20 offen')
    a('L_exit1:'); a('s_endpgm')
    return L

def kd(name, vg, ao, sg=102):
    return f""".amdhsa_kernel {name}
  .amdhsa_next_free_vgpr {vg}
  .amdhsa_next_free_sgpr {sg}
  .amdhsa_accum_offset {ao}
  .amdhsa_group_segment_fixed_size 0
  .amdhsa_kernarg_size 104
  .amdhsa_user_sgpr_count 2
  .amdhsa_user_sgpr_kernarg_segment_ptr 1
  .amdhsa_system_sgpr_workgroup_id_x 1
.end_amdhsa_kernel
"""

def generate(opt):
    g = G(opt)
    setup_late(g)
    body, st = g.build()
    hdr = open('cdna_kernels/' + KN + '.s.ref').read().split('; Override launch')[0]
    s = hdr
    if g.ik: s += f'; @launch grid=(256,1,1) block=(256,1,1) lds={LDS_BYTES}\n'
    else:
        s += f'; @launch kernel={KN}_kernel grid=(256,1,1) block=(256,1,1) lds={LDS_BYTES}\n'
        s += f'; @launch kernel=reduce_kernel grid=(256,1,1) block=(256,1,1) lds=0\n'
    s += '.amdgcn_target "amdgcn-amd-amdhsa--gfx950"\n.text\n' + MACROS.replace(' nt lds', ' ' + opt.get('kvpol', 'nt').replace('+', ' ') + ' lds')
    s += f'.globl {KN}_kernel\n.p2align 8\n.type {KN}_kernel,@function\n{KN}_kernel:\n'
    tail = []
    if opt.get('stamp'):
        n = st['nstamp']
        tail += ['s_memtime s[62:63]', 's_waitcnt vmcnt(0) lgkmcnt(0)']
        for j, r in enumerate((60, 62, 90)): tail.append(f'v_writelane_b32 v{TMP+2*j+(n>>6)},s{r},{n&63}')
        n += 1
        tail += ['s_memtime s[60:61]', 's_memrealtime s[90:91]', 's_waitcnt lgkmcnt(0)']
        for j, r in enumerate((60, 62, 90)): tail.append(f'v_writelane_b32 v{TMP+2*j+(n>>6)},s{r},{n&63}')
        tail += ['s_add_u32 s8,s88,0x4000000', 's_addc_u32 s9,s89,0', 's_mov_b32 s10,0x1000000',
                 f's_lshl_b32 s3,s2,2', f's_add_u32 s3,s3,s{sW}', 's_mul_i32 s3,s3,1536',
                 f'v_subrev_u32 v0,{PR},v{vL16}', 'v_lshrrev_b32 v0,2,v0']
        for j in range(6): tail.append(f'buffer_store_dword v{TMP+j},v0,s[8:11],s3 offen offset:{j*256}')
        print('; nstamp', n + 1)
    plan = dict((x.split(':')[0], int(x.split(':')[1])) for x in opt.get('touch', 'touch0:3,touchJ14:2,touchJ26:2').split(',') if x)
    body = [x for l in body for x in l.split('\n')]
    main = paginate(setup_main(opt) + body, plan, g.ool)
    s += '\n'.join(setup_entry(opt)) + '\n.p2align 12\nL_main:\n' + '\n'.join(main + tail) + '\nL_end0:\ns_endpgm\n' + '\n'.join(g.ool) + '\n'
    if not g.ik: s += '.globl reduce_kernel\n.p2align 8\n.type reduce_kernel,@function\nreduce_kernel:\n' + '\n'.join(reduce_kernel()) + '\n'
    s += '.section .rodata,"a"\n.p2align 6\n' + kd(KN + '_kernel', 512, 256)
    if not g.ik: s += '.p2align 6\n' + kd('reduce_kernel', 224, 224, 32)
    return s

if __name__ == '__main__':
    opt = dict(a.split('=') for a in sys.argv[2:])
    open(sys.argv[1], 'w').write(generate(opt))
```

```python
import heapq

class Op:
    __slots__ = ('kind', 'text', 'rd', 'wr', 'crd', 'cost', 'preds', 'succs', 'idx', 'dl', 'npred', 'pos', 't',
                 'k', 'soft', 'seq', 'prio', 'tag')
    def __init__(s, kind, text, rd=(), wr=(), crd=(), cost=1, prio=None, tag=None):
        s.kind = kind; s.text = text; s.rd = tuple(rd); s.wr = tuple(wr); s.crd = tuple(crd)
        s.cost = cost; s.preds = {}; s.succs = []; s.pos = None; s.t = None; s.prio = prio; s.tag = tag
        s.seq = None

VALU = ('valu', 'trans', 'perm')
DS = ('dsr', 'dsw')
VM = ('dma', 'store', 'load')

def regs(c, a, n=1): return [f'{c}{a+i}' for i in range(n)]

class Prog:
    def __init__(s):
        s.ops = []; s.lastw = {}; s.readers = {}
        s.last_salu = None; s.last_vm = None; s.last_bar = None; s.ds_since_bar = []; s.ds_after = None
        s.stampset = None; s.extra_gap = 0; s.DSSPACE = 0.8; s.TTMARGIN = 8.0
        s.DSLAT = 7.0; s.DMAGAP = 64; s.SAFE = 128
    def edge(s, a, b, states=0, lat=0, wait=None, dgap=0.0):
        if a is b: return
        e = b.preds.get(a)
        if e is None:
            b.preds[a] = [states, lat, wait, dgap]; a.succs.append(b)
        else:
            e[0] = max(e[0], states); e[1] = max(e[1], lat); e[2] = e[2] or wait; e[3] = max(e[3], dgap)
    def add(s, op):
        op.idx = len(s.ops)
        k = op.kind
        for r in op.rd:
            p = s.lastw.get(r)
            if p is not None: s.raw(p, op, r)
        for r in op.wr:
            p = s.lastw.get(r)
            if p is not None: s.waw(p, op, r)
            for q in s.readers.get(r, ()): s.war(q, op, r)
        for r in op.wr:
            s.lastw[r] = op; s.readers[r] = []
        for r in op.rd:
            if r not in op.wr or True: s.readers.setdefault(r, []).append(op)
        if k == 'salu':
            if s.last_salu: s.edge(s.last_salu, op, dgap=1.0)
            s.last_salu = op
        if k in VM:
            if s.last_vm: s.edge(s.last_vm, op, lat=s.DMAGAP + s.extra_gap, dgap=1.0)
            s.extra_gap = 0
            s.last_vm = op
        if k in DS:
            b = s.ds_after or s.last_bar
            if b: s.edge(b, op, dgap=0.5)
            s.ds_since_bar.append(op)
        if k == 'bar':
            for d in s.ds_since_bar: s.edge(d, op, lat=88, wait='lgkm', dgap=5.5)
            if s.last_bar: s.edge(s.last_bar, op)
            s.ds_since_bar = []; s.last_bar = op
        s.ops.append(op)
        return op
    def raw(s, p, c, r):
        pk, ck = p.kind, c.kind
        if pk == 'mfma':
            if ck == 'mfma':
                if r in c.crd and p.wr == c.crd: s.edge(p, c)
                else: s.edge(p, c, states=8)
            else: s.edge(p, c, states=8, lat=44, dgap=0)
        elif pk in VALU:
            if ck == 'mfma': s.edge(p, c, states=2, dgap=1.0)
            elif ck == 'perm': s.edge(p, c, states=2, lat=12, dgap=0.5 * p.cost + 0.5)
            elif ck == 'salu': s.edge(p, c, states=4, lat=20, dgap=1.5)
            elif ck in VALU: s.edge(p, c, states=(1 if pk == 'trans' else (2 if r[0] == 's' or r == 'vcc' else 0)), lat=4 * p.cost + 4, dgap=0.5 * p.cost)
            else: s.edge(p, c, states=(5 if r[0] == 's' else 1), lat=12, dgap=1.0)
        elif pk == 'dsr':
            s.edge(p, c, lat=96, wait='lgkm', dgap=s.DSLAT)
        elif pk in ('dma', 'load', 'store'):
            s.edge(p, c, wait='vm', dgap=2.0, lat=(1000 if pk == 'load' else 0))
        elif pk == 'salu':
            s.edge(p, c, states=(1 if r == 'm0' else 0), dgap=0.0)
        else:
            s.edge(p, c)
    def waw(s, p, c, r):
        pk, ck = p.kind, c.kind
        if pk == 'mfma':
            if ck == 'mfma': s.edge(p, c)
            else: s.edge(p, c, states=8, lat=44)
        elif pk == 'dsr': s.edge(p, c, lat=96, wait='lgkm', dgap=s.DSLAT)
        elif pk == 'load': s.edge(p, c, wait='vm')
        elif pk in VALU and ck == 'mfma': s.edge(p, c, states=2, dgap=1.0)
        else: s.edge(p, c)
    def war(s, q, c, r):
        qk, ck = q.kind, c.kind
        if qk == 'mfma' and r in q.crd and ck != 'mfma': s.edge(q, c, states=3)
        elif qk == 'store' and r[0] in 'va': s.edge(q, c, states=2, dgap=0.5)
        elif qk == 'dsr' and r[0] == '$': s.edge(q, c, lat=96, wait='lgkm', dgap=s.DSLAT)
        else: s.edge(q, c, dgap=(0.5 if ck == 'mfma' else 0.0))

    def schedule(s, vm_before=0, verbose=True, stamp=None):
        ops = s.ops
        k = 0
        for o in ops:
            if o.kind == 'mfma': o.k = k; k += 1
            else: o.k = k
        nm = k
        cap = {}
        for it in range(3):
            for o in reversed(ops):
                if o.kind == 'mfma': o.dl = float(o.k)
                else:
                    d = None
                    for c in o.succs:
                        x = c.dl - c.preds[o][3]
                        if d is None or x < d: d = x
                    if d is None: d = o.k + 24.0
                    if o.prio is not None: d = min(d, o.k + o.prio)
                    if o in cap: d = min(d, cap[o])
                    o.dl = d
            if it == 2 or not s.DSSPACE: break
            nx = 1e18
            for o in sorted((o for o in ops if o.kind in DS), key=lambda o: (-o.dl, -o.idx)):
                nx = min(o.dl, nx - s.DSSPACE); cap[o] = nx
        for o in ops: o.npred = len(o.preds); o.soft = 0
        ready = []
        out = []
        st = dict(pos=0, t=0, ds=0, vm=vm_before, dscov=0, vmcov=0, nops=0, extra=0, waits=0, stall=0, nstamp=0)
        dst = []
        def release(o):
            for c in o.succs:
                e = c.preds[o]
                c.soft = max(c.soft, o.t + e[1])
                c.npred -= 1
                if c.npred == 0 and c.kind != 'mfma': ready.append(c)
        def hard_gap(o, pos):
            n = 0
            for p, e in o.preds.items():
                if e[0]: n = max(n, e[0] - (pos - p.pos - 1))
            return n
        def need_wait(o):
            lg = vm = None
            for p, e in o.preds.items():
                if p.pos is None: continue
                if e[2] == 'lgkm' and p.seq > st['dscov']: lg = max(lg or 0, p.seq)
                if e[2] == 'vm' and p.seq > st['vmcov']: vm = max(vm or 0, p.seq)
            return lg, vm
        def emit_raw(text, cost):
            out.append(text); st['pos'] += 1; st['t'] += cost
        def emit_wait(lg, vm, cost):
            parts = []
            if vm is not None:
                n = min(st['vm'] - vm, 63); parts.append(f'vmcnt({n})'); st['vmcov'] = st['vm'] - n
            if lg is not None:
                while lg < st['ds'] and dst[lg] + s.SAFE <= st['t']: lg += 1
                n = min(st['ds'] - lg, 15); parts.append(f'lgkmcnt({n})'); st['dscov'] = st['ds'] - n
            emit_raw('s_waitcnt ' + ' '.join(parts), cost); st['waits'] += 1
        def emit(o, cost):
            lg, vm = need_wait(o)
            if o.kind == 'bar' and o.tag: out.append('@' + o.tag)
            if o.kind == 'bar' and stamp is not None and (s.stampset is None or o.tag in s.stampset):
                emit_raw('s_memtime s[62:63]', 4); lg = st['ds']
            if lg is not None or vm is not None:
                emit_wait(lg, vm, 4)
            if o.soft > st['t'] and (o.kind in ('mfma', 'bar') or lg is not None):
                st['stall'] += o.soft - st['t']; st['t'] = o.soft
            n = hard_gap(o, st['pos'])
            if n > 0:
                out.append(f's_nop {n-1}'); st['pos'] += n; st['t'] += 4 * n; st['nops'] += n
            o.pos = st['pos']; o.t = st['t']
            if o.kind in DS: st['ds'] += 1; o.seq = st['ds']; dst.append(st['t'])
            if o.kind in VM: st['vm'] += 1; o.seq = st['vm']
            emit_raw(o.text, cost)
            if o.kind == 'bar' and stamp is not None and (s.stampset is None or o.tag in s.stampset):
                n = st['nstamp']; st['nstamp'] += 1
                for j, r in enumerate((60, 62, 90)): emit_raw(f'v_writelane_b32 v{stamp+j},s{r},{n}', 4)
                emit_raw('s_memtime s[60:61]', 4); emit_raw('s_memrealtime s[90:91]', 4)
            release(o)
        for o in ops:
            if o.npred == 0 and o.kind != 'mfma': ready.append(o)
        mf = [o for o in ops if o.kind == 'mfma']
        order = {'dsr': 0, 'dsw': 1, 'dma': 2, 'load': 2, 'store': 3, 'valu': 4, 'trans': 4, 'perm': 4}
        def forced(target):
            while (target.npred > 0 if target is not None else ready):
                assert ready, 'deadlock'
                lim = (target.k + 0.01) if target is not None else 1e18
                cand = [o for o in ready]
                t = st['t']; pos = st['pos']
                good = [o for o in cand if o.soft <= t + 2 and hard_gap(o, pos) == 0]
                if good: o = min(good, key=lambda o: (o.dl, o.idx))
                else:
                    urg = [o for o in cand if o.dl <= lim] or cand
                    o = min(urg, key=lambda o: (max(o.soft - t, 4 * hard_gap(o, pos)), o.dl))
                ready.remove(o)
                c = 20 if o.kind == 'bar' else 4 * o.cost
                emit(o, c); st['extra'] += c
        marks = []
        for i, m in enumerate(mf):
            forced(m)
            if i and st['t'] < mf[i-1].t + 16: st['t'] = mf[i-1].t + 16
            emit(m, 4)
            if m.tag: marks.append((m.tag, st['t'], i))
            t0 = m.t; nxt = mf[i+1] if i + 1 < nm else None
            scal = None
            bars = [o for o in ready if o.kind == 'bar' and (o.soft <= t0 + 6 or o.dl <= i)]
            if bars:
                b = bars[0]; ready.remove(b)
                emit(b, 16); st['extra'] += 16
                scal = True
            tv = max(st['t'], t0 + 8)
            pick = []; slots = 0
            cand = [o for o in ready if o.kind not in ('salu', 'bar') and o.soft <= tv + 2 and hard_gap(o, st['pos']) == 0]
            cand.sort(key=lambda o: ((-1e9 if o.kind in ('dma', 'load') else o.dl), o.idx))
            if cand:
                first = cand[0]
                ones = [o for o in cand if o.cost == 1]
                twos = [o for o in cand if o.cost >= 2]
                if first.cost >= 2: pick = [first]
                elif len(ones) >= 2:
                    sec = [o for o in ones[1:] if not (o.kind in DS and first.kind in DS and o.dl > i + s.TTMARGIN)]
                    if sec: pick = [first, sec[0]]
                    elif twos and first.dl > i + s.TTMARGIN: pick = [twos[0]]
                    else: pick = [first]
                elif twos and first.dl > i + 2 and first.kind not in ('dma', 'load'): pick = [twos[0]]
                else: pick = [first]
                for o in cand:
                    if o not in pick and o.dl <= i + 0.25 and o.kind not in VM: pick.append(o)
            pick.sort(key=lambda o: (order[o.kind], o.dl, o.idx))
            lg = vm = None
            for o in pick + ([nxt] if nxt is not None else []):
                a, b2 = need_wait(o)
                if o is nxt and nxt.soft > t0 + 16 + 12 and False: continue
                if a is not None: lg = max(lg or 0, a)
                if b2 is not None: vm = max(vm or 0, b2)
            if lg is not None or vm is not None:
                emit_wait(lg, vm, 4)
                if scal: st['extra'] += 4
                scal = True
            sal = [o for o in ready if o.kind == 'salu' and hard_gap(o, st['pos']) == 0]
            if sal and (not scal or sum(o.cost for o in pick) < 2 or sal[0].dl <= i):
                o = sal[0]; ready.remove(o); emit(o, 4)
            if st['t'] < t0 + 8: st['t'] = t0 + 8
            for o in pick:
                ready.remove(o); emit(o, 4 * o.cost)
            if st['t'] > t0 + 16: st['extra'] += 0
        forced(None)
        assert all(o.pos is not None for o in ops)
        if verbose:
            print(f"; sched: mfma={nm} instrs={st['pos']} est_cycles={st['t']} ideal={16*nm} nops={st['nops']} waits={st['waits']} stall={st['stall']}")
            prev = None
            for tag, t, i in marks:
                if prev: print(f";   {prev[0]}: {t-prev[1]} cyc, {i-prev[2]} mfma")
                prev = (tag, t, i)
        return out, st
```

```python
import sys, struct, math
from sched import *

KN = 'concat_heads__mha_block_cached__gqa_block_cached__near_ridge'
def f2u(x): return struct.unpack('<I', struct.pack('<f', x))[0]
CSCALE = f2u(math.log2(math.e) / math.sqrt(128.0))

KS = [0, 16384, 32768]; XS = [49152, 65536]
VS = [81920, 98304]; WS_ = [114688, 131072]
GB = 147456; XR = GB + 4096; PR = GB + 12288
LDS_BYTES = 163840
XWIN = 32768
OA = 0; QA = 72; SB = 144; SR = 160; PB = 164; MB = 196; PRW = 208
vK = 210; vKr = 214; vV = 218
vX = 226; vXr = 228; vDW = 230; vSP = 232; vDXr = 240
vPw = 242; vL16 = 243; vGw = 244; vDK = 245; vDX = 247; TMP = 248; GT = 251; vF = 254
vV0 = MB + 4
vDUM = 241
vPoB = 226
vPoA = vK
vSt = 200; vOut = 202; vZ = 205; vOne = 206; SUM = OA + 36
def LAND(c): return [OA, 180, SB][c % 3]
FLOFF = 40 << 20
PACC = [QA, QA + 36, SB, QA, QA + 36, QA, QA + 36, SUM]
SEQ = [0, 1, 8, 9, 2, 10, 3, 4, 11, 5, 12, 6, 7, 13, 14, 15]
def RG(u): return 48 * u
aONE = 192; aPR = 196; aL = 204; aPOOL = 216
sK = 8; sV = 12; sWq = 16; sX = 20; sWo = 24; sWS = 28; sOUT = 32
sT = 64; sW = 44; sW4K = 45; sW1K = 46; sTW = 36; sTX = 92; sTC = 72
sTMP = 50; sFLAG = 47; sCS = 58; sFL = 80; sDBG = 84; sSPIN = 100; sFO = 101; sHS = 48; sHD = 49; sSO = 36; sLO = 38; sPC = 0

def rr(c, a, n): return f'{c}[{a}:{a+n-1}]' if n > 1 else f'{c}{a}'

class G:
    def __init__(s, opt):
        s.p = Prog(); s.opt = opt; s.ik = True
        s.NE = NE = int(opt.get('pe', 0))
        s.PT = {0: [(c, u) for c in range(3) for u in range(4)],
                3: [(0, 0), (0, 1), (0, 2), (1, 0), (1, 1), (1, 2), (0, 3), (1, 3)] + [(2, u) for u in range(4)],
                6: [(0, 0), (1, 0), (0, 1), (1, 1), (0, 2), (1, 2), (2, 0), (2, 1), (2, 2), (0, 3), (1, 3), (2, 3)]}[NE] + [(c, u) for c in range(3, 8) for u in range(4)]
        for k in ('DSLAT', 'DMAGAP'):
            if k in opt: setattr(s.p, k, float(opt[k]))
        s.pool = []; s.lastuse = {}; s.tick = 0; s.stmp = 0; s.tagnext = None; s.lastm = None; s.ool = []; s.ck = {}; s.nref = 0
    def mfma(s, d, a, b, c=None):
        D = regs(d[0], d[1], 4)
        if c == 0: ct = '0'; C = []
        else:
            c = c or d; ct = rr(c[0], c[1], 4); C = regs(c[0], c[1], 4)
        o = Op('mfma', f'M {rr(d[0],d[1],4)},{rr(a[0],a[1],4)},{rr(b[0],b[1],4)},{ct}',
               rd=regs(a[0], a[1], 4) + regs(b[0], b[1], 4) + C, wr=D, crd=C, tag=s.tagnext)
        s.tagnext = None
        s.lastm = o
        return s.p.add(o)
    def valu(s, text, rd, wr, kind='valu', cost=1, prio=None): return s.p.add(Op(kind, text, rd, wr, cost=cost, prio=prio))
    def salu(s, text, rd=(), wr=()): return s.p.add(Op('salu', text, rd, wr))
    def exp(s, v): return s.valu(f'E v{v}', [f'v{v}'], [f'v{v}'], 'trans', 2)
    def cvt(s, d, a, b): return s.valu(f'C v{d},v{a},v{b}', [f'v{a}', f'v{b}'], [f'v{d}'])
    def swap(s, n, a, b): return s.valu(f'v_permlane{n}_swap_b32 v{a},v{b}', [f'v{a}', f'v{b}'], [f'v{a}', f'v{b}'], 'perm', 2)
    def awr(s, a, v): return s.valu(f'v_accvgpr_write_b32 a{a},v{v}', [f'v{v}'], [f'a{a}'])
    def r128(s, d, addr, off, extra=()):
        assert 0 <= off < 65536, off
        return s.p.add(Op('dsr', f'R {rr(d[0],d[1],4)},v{addr},{off}', [f'v{addr}'] + list(extra), regs(d[0], d[1], 4)))
    def rtr(s, d, half, addr, off):
        assert 0 <= off < 65536, off
        return s.p.add(Op('dsr', f'T {rr(d[0],d[1]+2*half,2)},v{addr},{off}', [f'v{addr}'], regs(d[0], d[1] + 2 * half, 2)))
    def alloc(s):
        q = min(s.pool, key=lambda x: s.lastuse.get(x, -1))
        s.tick += 1; s.lastuse[q] = s.tick
        return q
    def stemp(s):
        s.stmp = (s.stmp + 1) % 8
        return sTMP + s.stmp
    def bar(s, tiles, tag=None):
        rd = []
        for t in tiles: rd += [f'#{t}:{p}' for p in range(1 if t.startswith('xr') else 4)]
        for r in rd: assert r in s.p.lastw, r
        return s.p.add(Op('bar', 's_barrier', rd, [], tag=tag))
    def dma(s, name, p, voff, srd, soff, off, pol, after, priv=None):
        wr = [f'#{name}:{p}'] + ([f'${priv}:{p}'] if priv is not None else [])
        o = Op('dma', f'{"Dn" if pol and not (s.opt.get("nohbm") and name[0] in "KV") else "D"} v{voff},s[{srd}:{srd+3}],s{soff},{off}', [f'v{voff}', f's{soff}', 'm0'], wr)
        s.p.add(o)
        if after is not None: s.p.edge(after, o)
        return o
    def ld_kv(s, which, n, after, priv=None, ps=range(4)):
        u, j = n >> 3, n & 7
        slot = KS[n % 3] if which == 'K' else VS[n % 2]
        s.salu(f's_add_u32 m0,s{sW4K},{slot}', wr=['m0'])
        t = s.stemp(); s.salu(f's_add_u32 s{t},s{sT+j},{u*131072}', wr=[f's{t}'])
        for p in ps: s.dma(f'{which}{n}', p, vDK + (p & 1), sK if which == 'K' else sV, t, 1024 * p, 1, after, priv)
    def pslot(s, n): return WS_[n & 1] if n < s.NE + 2 else [WS_[s.NE & 1], WS_[~s.NE & 1], XS[0], KS[2], KS[0], KS[1], VS[0], VS[1]][(n - s.NE) % 8]
    def wslot(s, m): return ([KS[0], KS[1]] + WS_ + VS + [KS[0], KS[1]] + (WS_ + VS) * 2)[SEQ.index(m)] if m < 16 else WS_[m & 1]
    def xslot(s, m): return [XS[0], XS[1], KS[2]][m % 3] if m < 8 else XS[m & 1]
    def ld_w(s, m, after, ps=range(4)):
        u, D = m >> 3, m & 7
        s.salu(f's_add_u32 m0,s{sW4K},{s.wslot(m)}', wr=['m0'])
        for h in range(2):
            q = [p for p in ps if p >> 1 == h]
            if not q: continue
            t = s.stemp(); s.salu(f's_add_u32 s{t},s{sTW+D},{u*256+h*129024}', wr=[f's{t}'])
            for p in q: s.dma(f'W{m}', p, vDW + (p & 1), sWq, t, 1024 * p, (m & 7) < int(s.opt.get('wnt', 8) if m < 16 else 0), after)
    def ld_x(s, m, ps=range(4)):
        D = m & 7; loc = s.xslot(m)
        s.salu(f's_add_u32 m0,s{sW4K},{loc}', wr=['m0'])
        for p in ps:
            if p: t = s.stemp(); s.salu(f's_add_u32 s{t},s{sTX+D},{7168*p}', wr=[f's{t}'])
            else: t = sTX + D
            s.dma(f'X{m}', p, vDX, sX, t, 1024 * p, m < int(s.opt.get('xnt', 8)), None, loc)
    def ld_xr(s, m2, after):
        s.salu(f's_add_u32 m0,s{sW1K},{XR+(m2&1)*4096}', wr=['m0'])
        s.dma(f'xr{m2}', 0, vDXr, sX, sTX + ((2 * m2) & 7), 0, 2 * m2 < int(s.opt.get('xnt', 8)), after)
    def ld_wo(s, n, after, ps=range(4)):
        c, u = s.PT[n]
        s.salu(f's_add_u32 m0,s{sW4K},{s.pslot(n)}', wr=['m0'])
        for p in ps:
            t = s.stemp(); s.salu(f's_add_u32 s{t},s{sTC+c},{u*131072+7168*p}', wr=[f's{t}'])
            o = s.dma(f'O{n}', p, vDX, sWo, t, 1024 * p, 0, after)
        return o
    def xfrag(s, m): return RG([2, 3, 1, 3][(m & 7) >> 1] if m < 16 else m >> 3) + 24 * (m & 1)
    def rd_x(s, m):
        xf = s.xfrag(m); loc = s.xslot(m)
        for sg in range(2):
            for t in range(2):
                s.r128(('a', xf + (t * 2 + sg) * 4), vX + sg, loc - XWIN + t * 2048, [f'${loc}:{2*t}', f'${loc}:{2*t+1}'])
        for sg in range(2):
            s.r128(('a', xf + 16 + sg * 4), vXr + sg, ((m >> 1) & 1) * 4096 + (m & 1) * 2048)
    def qp(s, m, ul):
        acc = OA if m >> 3 == 1 else QA
        xf = s.xfrag(m); slot = s.wslot(m)
        areg, base = (vV, VS[0]) if slot >= VS[0] else (vV0, 0)
        fr = []
        for sg in range(2):
            f = s.alloc(); fr.append(f)
            for jj in range(2): s.rtr(f, jj, areg + ul, slot - base + (2 * sg + jj) * 4096)
        for t in range(3 if ul < 2 else 2):
            d = ('v', acc + t * 32 + ul * 4)
            for sg in range(2): s.mfma(d, fr[sg], ('a', xf + (t * 2 + sg) * 4), 0 if (m & 7) == 0 and sg == 0 else None)
    def qfin(s, u, pair, t):
        acc = (OA if u == 1 else QA) + t * 32 + pair * 8
        for i in range(8): s.valu(f'v_mul_f32 v{acc+i},s{sCS},v{acc+i}', [f'v{acc+i}'], [f'v{acc+i}'])
        for i in range(4): s.cvt(acc + i, acc + 2 * i, acc + 2 * i + 1)
        s.swap(16, acc, acc + 2); s.swap(16, acc + 1, acc + 3)
        if t < 2:
            for i in range(4): s.awr(RG(u) + (t * 4 + pair) * 4 + i, acc + i)
        else:
            s.p.add(Op('dsw', f'ds_write_b128 v{vGw},{rr("v",acc,4)}', [f'v{vGw}'] + regs('v', acc, 4), [], cost=5))
    def gather(s, u, first, off=0):
        keep = s.p.ds_after; s.p.ds_after = None
        for sl in range(first, 4):
            if sl: s.valu(f'v_xor_b32 v{GT-1+sl},{sl*1024},v{vGw}', [f'v{vGw}'], [f'v{GT-1+sl}'])
            s.r128(('a', RG(u) + 32 + 4 * sl), GT - 1 + sl if sl else vGw, off)
        s.p.ds_after = keep
    def rowmax(s, src, t):
        a, b = MB + 4 * t, MB + 4 * t + 1
        V = lambda x: f'v{x}'
        s.valu(f'v_max3_f32 v{a},v{src},v{src+1},v{src+2}', regs('v', src, 3), [V(a)])
        s.valu(f'v_max_f32 v{a},v{a},v{src+3}', [V(a), V(src + 3)], [V(a)])
        for n in (16, 32):
            s.valu(f'v_mov_b32 v{b},v{a}', [V(a)], [V(b)])
            s.swap(n, a, b)
            if n == 16: s.valu(f'v_max_f32 v{a},v{a},v{b}', [V(a), V(b)], [V(a)])
            else: s.valu(f'v_min_f32_e64 v{a},-v{a},-v{b}', [V(a), V(b)], [V(a)])
        for i in range(1, 4): s.valu(f'v_mov_b32 v{a+i},v{a}', [V(a)], [V(a + i)])
    def qk(s, n, kt):
        u = n >> 3; init = (n & 7) == 0 and kt == 0
        fr = [s.alloc() for _ in range(4)]
        for sl in range(4): s.r128(fr[sl], vK + sl, KS[n % 3] + kt * 4096)
        sb = SB + (kt & 1) * 8
        for t in range(3 if init else 2):
            d = ('v', sb + 4 * t if t < 2 else SR)
            for sl in range(4):
                s.mfma(d, fr[sl], ('a', RG(u) + (t * 4 + sl) * 4), None if sl else (0 if init else ('v', MB + 4 * t)))
        if init:
            for t in range(3): s.rowmax(sb + 4 * t if t < 2 else SR, t)
            for t in range(2):
                for i in range(4):
                    x = sb + 4 * t + i
                    s.valu(f'v_add_f32 v{x},v{x},v{MB+4*t}', [f'v{x}', f'v{MB+4*t}'], [f'v{x}'])
        for t in range(2):
            x = sb + 4 * t
            for i in range(4): s.exp(x + i)
            d = PB + (n & 1) * 16 + ((kt >> 1) * 2 + t) * 4 + (kt & 1) * 2
            s.cvt(d, x, x + 1); s.cvt(d + 1, x + 2, x + 3)
    def qkr(s, n):
        u = n >> 3
        fr = [s.alloc() for _ in range(4)]
        for sl in range(4): s.r128(fr[sl], vKr + sl, KS[n % 3])
        for sl in range(4): s.mfma(('v', SR), fr[sl], ('a', RG(u) + 32 + sl * 4), None if sl else ('v', MB + 8))
        for i in range(4): s.exp(SR + i)
        s.cvt(PRW, SR, SR + 1); s.cvt(PRW + 1, SR + 2, SR + 3)
    def wr_pr(s, n):
        s.p.add(Op('dsw', f'ds_write_b64 v{vPw},v[{PRW}:{PRW+1}] offset:{(n&1)*2048}', [f'v{vPw}'] + regs('v', PRW, 2), [], cost=3))
    def rd_pr(s, n):
        for sg in range(2): s.r128(('a', aPR + 4 * sg), vL16, (n & 1) * 2048 + sg * 1024)
    def pfrag(s, n, sg, t): return ('v', PB + (n & 1) * 16 + (sg * 2 + t) * 4) if t < 2 else ('a', aPR + 4 * sg)
    def pv(s, n, ul):
        fr = []
        for sg in range(2):
            f = s.alloc(); fr.append(f)
            for jj in range(2): s.rtr(f, jj, vV + ul, VS[n % 2] - VS[0] + (2 * sg + jj) * 4096)
        for t in range(3 if ul < 2 else 2):
            for sg in range(2): s.mfma(('v', OA + t * 32 + ul * 4), fr[sg], s.pfrag(n, sg, t), 0 if (n & 7) == 0 and sg == 0 else None)
    def ones(s, n, ts=(2, 0, 1)):
        for t in ts:
            for sg in range(2): s.mfma(('a', aL + 4 * t), ('a', aONE), s.pfrag(n, sg, t), 0 if (n & 7) == 0 and sg == 0 else None)
    def ofin_l(s, u):
        for t in range(3):
            x = GT + t
            s.valu(f'v_accvgpr_read_b32 v{x},a{aL+4*t}', [f'a{aL+4*t}'], [f'v{x}'])
            s.valu(f'v_rcp_f32 v{x},v{x}', [f'v{x}'], [f'v{x}'], 'trans', 2)
    def ofin(s, u, pair, t):
        acc = OA + t * 32 + pair * 8; x = GT + t
        for i in range(8): s.valu(f'v_mul_f32 v{acc+i},v{x},v{acc+i}', [f'v{acc+i}', f'v{x}'], [f'v{acc+i}'])
        for i in range(4): s.cvt(acc + i, acc + 2 * i, acc + 2 * i + 1)
        for i in range(4): s.awr(RG(u) + (t * 4 + pair) * 4 + i, acc + i)
    def ofin_all(s, u):
        s.ofin_l(u)
        s.ofin(u, 0, 2)
        for pair in range(4):
            for t in range(2): s.ofin(u, pair, t)
    def owr(s, u, off=0):
        s.p.add(Op('dsw', f'ds_write_b128 v{vGw},{rr("a",RG(u)+32,4)} offset:{off}', [f'v{vGw}'] + regs('a', RG(u) + 32, 4), [], cost=5))
    def pacc(s, c): return PACC[c]
    def pp(s, n, nl):
        c, u = s.PT[n]
        acc = PACC[c]; slot = s.pslot(n); ar, bs = (vPoA, 0) if slot < 65536 else (vPoB, VS[0])
        fr = []
        for sl in range(4):
            f = s.alloc(); fr.append(f)
            for jj in range(2): s.rtr(f, jj, ar + nl * 4 + sl, slot - bs + jj * 2048)
        for t in range(3 if nl == 0 else 2):
            d = ('v', acc + t * 16 + nl * 4)
            for sl in range(4): s.mfma(d, fr[sl], ('a', RG(u) + (t * 4 + sl) * 4), 0 if u == 0 and sl == 0 and c < 7 else None)
    def pst(s, c, q):
        x = PACC[c] + q * 8; n = 4 if q < 4 else 2
        if q == 0:
            s.salu(f's_add_u32 s3,s5,{c+1}'); s.salu('s_and_b32 s3,s3,7')
            s.salu(f's_mul_i32 s3,s3,147456'); s.salu(f's_add_u32 s{sSO+(c&1)},s3,s{sHS}', wr=[f's{sSO+(c&1)}'])
        for i in range(n): s.cvt(x + i, x + 2 * i, x + 2 * i + 1)
        pol = s.opt.get('stpol', 'sc1').replace('+', ' ')
        sWS_ = sDBG if 's' in s.opt.get('xoff', '') else sWS
        s.here(s.p.add(Op('store', f'buffer_store_dwordx{n} {rr("v",x,n)},v{vSt+(q>>2) if sWS_ == sWS else vSt+1},s[{sWS_}:{sWS_+3}],s{sSO+(c&1)} offen offset:{(q&3)*1024} {pol}',
                          regs('v', x, n) + [f'v{vSt+(q>>2)}', f's{sSO+(c&1)}'], [f'#st{c}'] if q == 4 else [], cost=n + 1, prio=5)))
    def here(s, o):
        if s.lastm is not None: s.p.edge(s.lastm, o)
        return o
    def flagset(s, c):
        if 'f' in s.opt.get('xoff', ''): return
        s.here(s.p.add(Op('store', f'buffer_store_dword v{vOne},v{vZ},s[{sFL}:{sFL+3}],s{sFO} offen offset:{c*128} sc1',
                          [f'v{vOne}', f'v{vZ}', f'#st{c}'], [], cost=2, prio=1)))
    def spin(s, name, ld, cmp):
        s.ool += [f'L_sp{name}:', f's_mov_b32 s{sSPIN},0x40000', f'L_sq{name}:', ld, 's_waitcnt vmcnt(0)'] + cmp + [
                  f's_cbranch_vccnz L_rt{name}', f's_sub_u32 s{sSPIN},s{sSPIN},1', f's_cmp_lg_u32 s{sSPIN},0',
                  f's_cbranch_scc1 L_sq{name}', f's_branch L_rt{name}']
    def poll(s, c):
        t = 90 + (c & 1) if not s.opt.get('stamp') else 4 + 3 * (c & 1)
        s.salu(f's_sub_u32 s3,s5,{c+1}', wr=['s3']); s.salu('s_and_b32 s3,s3,7', wr=['s3'])
        s.salu(f's_lshl_b32 s3,s3,12', wr=['s3']); s.salu(f's_add_u32 s{t},s3,s{sW1K}', wr=[f's{t}'])
        ld = f'buffer_load_dword v{vF+(c&1)},off,s[{sFL}:{sFL+3}],s{t} offset:{c*128} sc1'
        if 'f' not in s.opt.get('xoff', ''): s.here(s.p.add(Op('load', ld, [f's{t}'], [f'v{vF+(c&1)}'])))
        s.spin(f'{c}', ld, [f'v_cmp_eq_u32 vcc,1,v{vF+(c&1)}'])
        s.pt = t
    def check(s, c):
        t = 90 + (c & 1) if not s.opt.get('stamp') else 4 + 3 * (c & 1)
        ck = s.here(s.valu(f'v_cmp_eq_u32 vcc,1,v{vF+(c&1)}\n{"s_nop 0" if "c" in s.opt.get("xoff","") else "s_cbranch_vccz L_sp%d" % c}\nL_rt{c}:', [f'v{vF+(c&1)}', f's{t}', '#mk'], ['vcc', f'v{vF+(c&1)}'], cost=2, prio=1))
        s.salu(f's_sub_u32 s3,s5,{c+1}', wr=['s3']); s.salu('s_and_b32 s3,s3,7', wr=['s3'])
        s.salu(f's_mul_i32 s3,s3,18432', wr=['s3']); s.salu(f's_add_u32 s{sLO+(c&1)},s3,s{sHD}', wr=[f's{sLO+(c&1)}'])
        s.ck[c] = ck
    def pld(s, c, q):
        if 'L' in s.opt.get('xoff', ''): return
        L = LAND(c); n = 4 if q < 4 else 2; t2 = sLO + (c & 1)
        sWS_ = sDBG if 'l' in s.opt.get('xoff', '') else sWS
        o = s.here(s.p.add(Op('load', f'buffer_load_dwordx{n} {rr("v",L+4*q,n)},v{vSt+(q>>2) if sWS_ == sWS else vSt+1},s[{sWS_}:{sWS_+3}],s{t2} offen offset:{(q&3)*1024} {s.opt.get("ldpol","sc1").replace("+"," ")}',
                              [f'v{vSt+(q>>2)}', f's{t2}'], regs('v', L + 4 * q, n))))
        s.p.edge(s.ck[c], o, states=1)
    def addp(s, c):
        L = LAND(c); V = lambda x: f'v{x}'
        for i in range(18):
            x = L + i; d = SUM + 2 * i
            if c == 0:
                s.here(s.valu(f'v_lshlrev_b32 v{d},16,v{x}', [V(x)], [V(d)])); s.here(s.valu(f'v_and_b32 v{d+1},0xffff0000,v{x}', [V(x)], [V(d + 1)]))
            else:
                y = L + 18 + (i & 1)
                s.here(s.valu(f'v_lshlrev_b32 v{y},16,v{x}', [V(x)], [V(y)])); s.valu(f'v_add_f32 v{d},v{d},v{y}', [V(d), V(y)], [V(d)])
                s.here(s.valu(f'v_and_b32 v{x},0xffff0000,v{x}', [V(x)], [V(x)])); s.valu(f'v_add_f32 v{d+1},v{d+1},v{x}', [V(d + 1), V(x)], [V(d + 1)])
    def outfin(s):
        for q in range(4):
            x = SUM + q * 8
            for i in range(4): s.cvt(x + i, x + 2 * i, x + 2 * i + 1)
            s.swap(16, x, x + 2); s.swap(16, x + 1, x + 3)
            s.p.add(Op('store', f'buffer_store_dwordx4 {rr("v",x,4)},v{vOut+(q&1)},s[{sOUT}:{sOUT+3}],{"s%d"%(sTMP+9) if q>>1 else 0} offen',
                       regs('v', x, 4) + [f'v{vOut+(q&1)}', f's{sTMP+9}'], [], cost=5))
        x = SUM + 32
        s.cvt(x, x, x + 1); s.cvt(x + 1, x + 2, x + 3)
        s.p.add(Op('store', f'buffer_store_dwordx2 {rr("v",x,2)},v{vOut+2},s[{sOUT}:{sOUT+3}],0 offen', regs('v', x, 2) + [f'v{vOut+2}'], [], cost=3))
    def paddr(s):
        V = lambda x: f'v{x}'
        def op(t, rd, wr): s.valu(t, [V(x) for x in rd], [V(x) for x in wr])
        a, b, c, d = vPoB + 1, vPoB + 2, vPoB + 3, vPoB + 4
        op(f'v_subrev_u32 v{a},{PR},v{vL16}', [vL16], [a])
        op(f'v_lshrrev_b32 v{b},6,v{a}', [a], [b])
        op(f'v_bfe_u32 v{c},v{a},5,1', [a], [c])
        op(f'v_lshl_add_u32 v{c},s{sW},1,v{c}', [c], [c])
        op(f'v_and_b32 v{d},6,v{b}', [b], [d])
        op(f'v_xor_b32 v{c},v{c},v{d}', [c, d], [c])
        op(f'v_lshlrev_b32 v{c},4,v{c}', [c], [c])
        op(f'v_lshl_add_u32 v{c},v{b},7,v{c}', [b, c], [c])
        op(f'v_bfe_u32 v{d},v{a},4,1', [a], [d])
        op(f'v_lshl_add_u32 v{c},v{d},3,v{c}', [c, d], [c])
        op(f'v_add_u32 v{c},s{sW4K},v{c}', [c], [c])
        op(f'v_add_u32 v{vPoB},{VS[0]},v{c}', [c], [vPoB])
        for nl in range(4):
            for sl in range(4):
                if nl or sl: op(f'v_xor_b32 v{vPoB+nl*4+sl},{nl*32+sl*4096},v{vPoB}', [vPoB], [vPoB + nl * 4 + sl])
    def paddr2(s):
        V = lambda x: f'v{x}'
        def op(t, rd, wr): s.valu(t, [V(x) for x in rd], [V(x) for x in wr])
        for k in range(16): op(f'v_subrev_u32 v{vPoA+k},{VS[0]},v{vPoB+k}', [vPoB + k], [vPoA + k])
        e, d = 207, PRW; a, b, c = vOut, vOut + 1, vOut + 2
        op(f'v_subrev_u32 v{e},{PR},v{vL16}', [vL16], [e])
        op(f'v_mov_b32 v{d},s{sW}', [], [d]); op(f'v_mul_u32_u24 v{d},4608,v{d}', [d], [d])
        op(f'v_add_u32 v{vSt},v{e},v{d}', [e, d], [vSt])
        op(f'v_lshrrev_b32 v{vSt+1},1,v{e}', [e], [vSt + 1])
        op(f'v_add_u32 v{vSt+1},v{vSt+1},v{d}', [vSt + 1, d], [vSt + 1]); op(f'v_add_u32 v{vSt+1},4096,v{vSt+1}', [vSt + 1], [vSt + 1])
        op(f'v_bfe_u32 v{b},v{e},4,4', [e], [b]); op(f'v_lshrrev_b32 v{d},8,v{e}', [e], [d])
        op(f'v_lshlrev_b32 v{b},11,v{b}', [b], [b])
        op(f'v_lshlrev_b32 v{c},3,v{d}', [d], [c]); op(f'v_lshl_add_u32 v{c},s{sW},5,v{c}', [c], [c])
        op(f'v_add_u32 v{c},v{c},v{b}', [b, c], [c]); op(f'v_add_u32 v{c},262144,v{c}', [c], [c])
        op(f'v_lshl_add_u32 v{b},s{sW},16,v{b}', [b], [b])
        op(f'v_lshrrev_b32 v{a},1,v{d}', [d], [a]); op(f'v_lshl_add_u32 v{b},v{a},4,v{b}', [a, b], [b])
        op(f'v_and_b32 v{d},1,v{d}', [d], [d]); op(f'v_xor_b32 v{d},s{sW},v{d}', [d], [d])
        op(f'v_lshl_add_u32 v{a},v{d},5,v{b}', [d, b], [a])
        op(f'v_xor_b32 v{b},64,v{a}', [a], [b])
        op(f'v_lshrrev_b32 v{d},9,v{e}', [e], [d]); op(f'v_lshrrev_b32 v{vZ},2,v{e}', [e], [vZ])
        op(f'v_lshl_add_u32 v{vZ},v{d},20,v{vZ}', [d, vZ], [vZ])
        op(f'v_mov_b32 v{vOne},1', [], [vOne])
        s.salu(f's_mov_b32 s{sTMP+9},32768', wr=[f's{sTMP+9}'])
    def refresh(s, tmp, dst):
        s.nref += 1
        s.valu(f'v_subrev_u32 v{tmp},{GB},v{vGw}', [f'v{vGw}'], [f'v{tmp}'])
        s.valu(f'v_and_b32 v{tmp},0xfc0,v{tmp}', [f'v{tmp}'], [f'v{tmp}'])
        s.salu('s_bfe_u32 s3,s2,0x20003'); s.salu(f's_lshl_b32 s{sSPIN},s3,12', wr=[f's{sSPIN}'])
        s.valu(f'v_add_lshl_u32 v{tmp},s{sSPIN},v{tmp},1', [f'v{tmp}', f's{sSPIN}'], [f'v{tmp}'])
        s.valu(f'v_min_u32 v{tmp},L_end0-L_rf{s.nref},v{tmp}', [f'v{tmp}'], [f'v{tmp}'])
        s.here(s.p.add(Op('load', f's_getpc_b64 s[{sPC}:{sPC+1}]\nL_rf{s.nref}:\nglobal_load_dword v{dst},v{tmp},s[{sPC}:{sPC+1}]', [f'v{tmp}'], [f'v{dst}'], cost=2)))
    def loads(s, order, fn, cnt):
        k = 0
        while k < len(order):
            ch = order[k]; e = k
            while e < len(order) and order[e] == ch: e += 1
            a = cnt.get(ch, 0); cnt[ch] = a + e - k
            if ch == '.': s.p.extra_gap += s.p.DMAGAP * (e - k)
            elif fn.get(ch): fn[ch](range(a, a + e - k))
            k = e

    def build(s):
        opt = s.opt; NE = s.NE
        base = [('a', aPOOL + 4 * i) for i in range(10)]
        A = lambda a, n: [('a', a + 4 * i) for i in range(n)]
        Vq = lambda a, n: [('v', a + 4 * i) for i in range(n)]
        def QF(m, ul, rem=True):
            if m & 7 != 7 or not ul & 1: return
            h = m >> 3
            if ul == 1 and rem: s.qfin(h, 0, 2)
            if h < 2:
                for t in range(2): s.qfin(h, ul >> 1, t)
            else:
                if ul == 7: s.qfin(h, 2, 1)
                for t in range(1 if ul == 5 else 2): s.qfin(h, ul >> 1, t)
        s.pool = base + Vq(SB, 14)
        for ul in range(8): s.valu(f'v_subrev_u32 v{vV0+ul},{VS[0]},v{vV+ul}', [f'v{vV+ul}'], [f'v{vV0+ul}'])
        init = [lambda: s.ld_x(0), lambda: s.ld_w(0, None), lambda: s.ld_xr(0, None), lambda: s.ld_x(1), lambda: s.ld_w(1, None),
                lambda: s.ld_w(8, None), lambda: s.ld_w(9, None), lambda: s.ld_xr(1, None), lambda: s.ld_x(2), lambda: s.ld_w(2, None), lambda: s.ld_w(10, None)]
        for k, f in enumerate(init):
            f()
            if k == int(opt.get('nb', 6)): last0 = s.p.last_vm
        b = s.bar(['W0', 'X0', 'xr0'], 'Q0'); s.p.edge(last0, b)
        WI = {i: i + 5 for i in range(1, 7)}; WI.update({i: i + 3 for i in range(9, 15)})
        for i, m in enumerate(SEQ):
            prev = b
            if 0 < i < 15:
                nx = SEQ[i + 1]
                b = s.bar([f'W{nx}'] + ([f'xr{nx>>1}'] if nx < 8 else []), f'Q{i+1}')
            s.p.ds_after = prev
            if m < 8: s.rd_x(m)
            if i >= 1 and SEQ[i - 1] in (1, 3, 5, 7): s.ld_xr({1: 2, 3: 3, 5: 8, 7: 9}[SEQ[i - 1]], b)
            if m < 5: s.ld_x(m + 3)
            if i in WI: s.ld_w((SEQ + [16, 17])[WI[i]], b)
            if m in (6, 7): s.ld_x(m + 10)
            if i == 4:
                s.salu('s_mul_i32 s3,s2,%s' % opt.get('hash', '0x9e3779b1'), wr=['s3']); s.salu('s_lshr_b32 s3,s3,29', wr=['s3'])
                for k in range(8):
                    s.salu(f's_add_u32 s7,s3,{k}'); s.salu('s_and_b32 s7,s7,7'); s.salu(f's_lshl_b32 s{sT+k},s7,14')
            if i == int(opt.get('tq', 99)):
                s.valu(f'v_subrev_u32 v{vF},{PR},v{vL16}', [f'v{vL16}'], [f'v{vF}'])
                s.valu(f'v_lshrrev_b32 v{vF+1},6,v{vF}', [f'v{vF}'], [f'v{vF+1}'])
                s.valu(f'v_and_b32 v{vF},48,v{vF}', [f'v{vF}'], [f'v{vF}']); s.valu(f'v_lshlrev_b32 v{vF},3,v{vF}', [f'v{vF}'], [f'v{vF}'])
                s.valu(f'v_lshl_add_u32 v{vF},v{vF+1},13,v{vF}', regs('v', vF, 2), [f'v{vF}'])
                s.valu(f'v_lshrrev_b32 v{vF+1},3,v{vF+1}', [f'v{vF+1}'], [f'v{vF+1}'])
                s.valu(f'v_lshl_add_u32 v{vF},v{vF+1},23,v{vF}', regs('v', vF, 2), [f'v{vF}'])
                t = s.stemp(); s.salu('s_lshl_b32 s3,s6,2'); s.salu(f's_add_u32 s3,s3,s{sW}'); s.salu(f's_lshl_b32 s{t},s3,16', wr=[f's{t}'])
                s.p.add(Op('load', f'buffer_load_dword v{vDUM},v{vF},s[{sWq}:{sWq+3}],s{t} offen offset:512 nt', [f'v{vF}', f's{t}'], [f'v{vDUM}']))
            if i == int(opt.get('k0', 7)): s.ld_kv('K', 0, b)
            if i == int(opt.get('k1', 8)): s.ld_kv('K', 1, b)
            if i == 14 and opt.get('k2', '1') == '1': s.ld_kv('K', 2, b)
            s.tagnext = f'Q{i}'
            for ul in range(8):
                s.qp(m, ul); QF(m, ul, m == 7)
                if i == 0 and ul == 4: b = s.bar(['W1'], 'Q1')
        seg = {J: [] for J in range(33)}
        seg[0].append(('W', 16, range(8)))
        for a, J in ((17, 1), (19, 4), (21, 7), (24, 12), (26, 15), (28, 18), (30, 21)):
            seg[J].append(('W', a, range(5))); seg[J + 1] += [('W', a, range(5, 8)), ('W', a + 1, range(2))]; seg[J + 2].append(('W', a + 1, range(2, 8)))
        seg[10].append(('W', 23, range(5))); seg[11].append(('W', 23, range(5, 8)))
        for n in range(NE):
            if NE == 6: seg[26 + n].append(('O', n, range(4)))
            else: seg[26 + 2 * n].append(('O', n, range(2))); seg[27 + 2 * n].append(('O', n, range(2, 4)))
        seg[32].append(('O', NE, range(2)))
        Jf = {}; Jl = {}
        for J in range(33):
            for k, t, g in seg[J]: Jf.setdefault((k, t), J); Jl[(k, t)] = J
        wl = {J: [] for J in range(33)}
        for m in range(18, 32): wl[Jl[('W', m - 2)]].append(('W', m))
        for n in range(NE + 2): wl[Jl[('O', n - 2)] if n >= 2 else (24 + n if NE else 27 + n)].append(('O', n))
        s.p.DMAGAP = float(opt.get('GAP2', 100))
        o0, o1 = opt.get('order', 'VVVVXXXX,KKKKWWWWR').split(',')
        bB = None
        for J in range(32):
            u, j = J >> 3, J & 7
            if J < 12: s.pool = base + A(RG(3), 12)
            elif u < 3: s.pool = base + A(RG(0) + 36, 3) + Vq(vSP, 2) + (A(RG(1) + 36, 3) if u == 2 else [])
            else: s.pool = base + (A(RG(2) + 36, 3) if j < 4 else []) + (A(RG(0) + 36, 3) + A(RG(1) + 36, 3) if j == 0 else Vq(QA + 40, 8) if j == 1 or (NE < 6 and j < 7) else [])
            bA = s.bar([f'V{J-1}'] if J else ['K0', 'W16', 'X16', 'xr8'], f'A{J}')
            s.p.ds_after = bB
            if J in (0, 2, 12, 24): s.gather({0: 0, 2: 1, 12: 2, 24: 3}[J], 0)
            if J == 25: s.gather(0, 1, 4096); s.gather(1, 1, 8192)
            if J == 28: s.gather(2, 1)
            xs = [t for k, t, g in seg[J] if k == 'W' and Jf[(k, t)] == J]
            for t in xs: s.rd_x(t)
            fn = dict(V=(lambda ps: s.ld_kv('V', J, bA, None, ps)),
                      K=(lambda ps: s.ld_kv('K', J + 2, bA, None, ps)) if J < 30 and (J or opt.get('k2', '1') != '1') else None,
                      X=(lambda ps: s.ld_x(xs[0] + 2, ps)) if xs and xs[0] + 2 < 32 else (lambda ps: s.ld_wo(NE + J - 27, bA, ps)) if J >= 29 else None)
            cnt = {}
            s.loads(o0, fn, cnt)
            if J == int(opt.get('to', 22)):
                s.valu(f'v_subrev_u32 v{vF},{GB},v{vGw}', [f'v{vGw}'], [f'v{vF}']); s.valu(f'v_lshlrev_b32 v{vF},3,v{vF}', [f'v{vF}'], [f'v{vF}'])
                t = s.stemp(); s.salu(f's_lshl_b32 s{t},s6,15', wr=[f's{t}'])
                for k, pol in enumerate(opt.get('topol', 'nt,sc1').split(',')):
                    if k: s.p.extra_gap = -s.p.DMAGAP
                    s.p.add(Op('load', f'buffer_load_dword v{vDUM if k else vF+1},v{vF},s[{sWo}:{sWo+3}],s{t} offen {pol}', [f'v{vF}', f's{t}'], [f'v{vDUM if k else vF+1}']))
            if J == 23:
                s.salu('s_add_u32 s6,s6,s5')
                for k in range(8):
                    s.salu(f's_add_u32 s7,s6,{k+1}'); s.salu('s_and_b32 s7,s7,7'); s.salu(f's_lshl_b32 s{sTC+k},s7,7')
            if J == 25: s.paddr()
            if str(J) in opt.get('rf', '').split(','): s.refresh(vF, vF + 1)
            if 1 <= J <= 8:
                s.salu(f's_xor_b32 s3,s5,{J-1}'); s.salu(f's_lshl_b32 s3,s3,4'); s.salu(f's_sub_u32 s{sSPIN},s3,{GB}', wr=[f's{sSPIN}'])
                s.valu(f'v_add_lshl_u32 v{vF},s{sSPIN},v{vGw},4', [f'v{vGw}', f's{sSPIN}'], [f'v{vF}'])
                if J == 1: s.valu(f'v_mov_b32 v{vF+1},1', [], [f'v{vF+1}'])
                s.p.edge(bA, s.p.add(Op('store', f'buffer_store_byte v{vF+1},v{vF},s[{sDBG}:{sDBG+3}],s5 offen sc1', regs('v', vF, 2), [], cost=2, prio=50)))
            if J == 26:
                s.valu(f'v_mov_b32 v{GT},s{sW4K}', [], [f'v{GT}'])
                mk = f'buffer_load_dwordx2 v[{vF}:{vF+1}],v{GT},s[{sDBG}:{sDBG+3}],0 offen sc1'
                s.p.add(Op('load', mk, [f'v{GT}'], regs('v', vF, 2)))
                s.salu(f's_cmp_eq_u32 s{sW},0\ns_cselect_b32 s{sSO},0x01010101,0', wr=[f's{sSO}'])
            if J == 27:
                cm = [f'v_and_b32 v{vF},v{vF},v{vF+1}', f'v_cmp_eq_u32 vcc,s{sSO},v{vF}']
                mkchk = ('\n'.join(cm) + '\ns_cbranch_vccz L_spm\nL_rtm:', regs('v', vF, 2) + [f'v{GT}', f's{sSO}'], ['vcc', '#mk'] + regs('v', vF, 2))
                s.spin('m', mk, cm)
            grp = [(k, t, g) for k, t, gs in seg[J] for g in gs]
            def G(a, b_):
                for k, t, g in grp[a:b_]:
                    if k == 'W': s.qp(t, g); QF(t, g, False)
                    else: s.pp(t, g)
            s.tagnext = f'I{J}'
            if j == 1 and J > 1: s.ofin_all(u - 1)
            ng = len(grp); h = 3 if len(seg[J]) == 2 else (ng + 1) // 2 if grp and grp[0][2] else ng // 2
            if J == 0:
                G(0, 2); s.qk(J, 0); G(2, 5); s.qkr(J); s.qk(J, 1); G(5, 7); s.qk(J, 2); G(7, 8)
            elif j == 0:
                s.qk(J, 0); G(0, h + 1); s.qkr(J); s.qk(J, 1); G(h + 1, ng)
            else:
                s.qkr(J); s.qk(J, 0); G(0, h); s.qk(J, 1); G(h, ng)
            tiles = [f'K{J+1}'] if J < 31 else []
            for k, t, g in seg[J + 1]:
                if Jf[(k, t)] == J + 1: tiles += [f'{k}{t}'] + ([f'xr{t>>1}'] if k == 'W' else [])
            bB = s.bar(tiles, f'B{J}')
            s.p.ds_after = bA
            s.wr_pr(J)
            if J == 0: s.p.ds_after = bB; s.qfin(1, 0, 2); s.p.ds_after = bA
            if J in (10, 22): s.qfin(2 if J == 10 else 3, 0, 2)
            if J == 24: s.owr(0, 4096); s.owr(1, 8192)
            if J == 26: s.owr(2)
            if J == 27: mkop = s.valu(*mkchk, cost=3, prio=20); s.p.edge(bB, mkop)
            assert len(wl[J]) <= 1
            fn.update(W=None if not wl[J] else (lambda ps: s.ld_w(wl[J][0][1], bB, ps)) if wl[J][0][0] == 'W' else (lambda ps: s.ld_wo(wl[J][0][1], bB, ps)),
                      R=(lambda ps: s.ld_xr((xs[0] + 3) // 2, bB)) if xs and xs[0] & 1 and xs[0] + 3 < 32 else None)
            s.loads(o1, fn, cnt)
            if J == 0: s.qk(J, 3)
            else:
                s.rd_pr(J - 1)
                s.pv(J - 1, 2); s.qk(J, 2)
                for ul in (3, 0, 1, 4): s.pv(J - 1, ul)
                s.qk(J, 3)
                for ul in range(5, 8): s.pv(J - 1, ul)
                s.ones(J - 1)
        s.p.DMAGAP = float(opt.get('GAP3', 48))
        s.pool = base
        b = s.bar(['V31', f'O{NE+1}'], 'A32'); s.p.edge(mkop, b)
        s.ld_wo(NE + 5, b); s.ld_wo(NE + 6, b)
        s.p.ds_after = bB
        s.tagnext = 'I32'
        s.pp(NE, 0); s.pp(NE, 1)
        s.p.ds_after = b
        s.rd_pr(31)
        for ul in (0, 1): s.pv(31, ul)
        s.ones(31)
        for ul in range(2, 8): s.pv(31, ul)
        s.ofin_all(3)
        s.pp(NE, 2); s.pp(NE, 3)
        s.paddr2()
        PF = [s.PT.index((c, 3)) + 1 for c in range(7)]
        sp, d1, d2, d3, d4 = [int(x) for x in opt.get('xt', '0,8,8,8,12').split(',')]
        e6 = int(opt.get('e6', 8))
        ev = {}; tail = []
        def at(pos, pri, f): (ev.setdefault(pos, []) if pos < 128 else tail).append((pri, pos, f))
        free = 0; lfree = 0; CH = []; AD = []
        for k in range(7):
            p0 = max(4 * PF[k], free); spk = sp if k < 6 else 0
            if k + 3 < 8 and PACC[k] in PACC[k + 1:]: assert p0 + 4 * spk < 4 * s.PT.index((k + 1 + PACC[k + 1:].index(PACC[k]), 0))
            for q in range(5): at(p0 + q * spk, 3, lambda k=k, q=q: s.pst(k, q))
            free = p0 + 4 * spk + 1
            fs = min(p0 + 4 * spk + (d1 if k < 6 else e6), 127)
            at(fs, 0, lambda k=k: s.flagset(k))
            po = max(fs + d2, CH[k - 2] if k >= 2 else 0)
            ch = max(po + d3, lfree, AD[k - 3] + 6 if k >= 3 else 0)
            if k == 6: po = max(po, 128); ch = max(ch, 129)
            at(po, 2, lambda k=k: s.poll(k)); at(ch, 1, lambda k=k: s.check(k))
            spl = int(opt.get('spl', sp)) if ch < 100 else 0
            for q in range(5): at(ch + q * spl, 1.5, lambda k=k, q=q: s.pld(k, q))
            lfree = ch + 4 * spl + 1
            ad = ch + 4 * spl + d4
            if ad > 104: ad = max(ad, 128)
            at(ad, 4, lambda k=k: s.addp(k))
            CH.append(ch); AD.append(ad)
            print(f';   piece {k}: store {p0} flag {fs} poll {po} check {ch} add {ad}')
        dq = []; dpat = opt.get('dpat', '1' * 16)
        for n in range(NE + 1, 32):
            if n == NE + 2: s.pool = base + A(aONE, 6)
            if n == NE + 4: s.pool = base + A(aONE, 6) + Vq(OA + 20, 4)
            prev = b
            if n < 31: b = s.bar([f'O{n+1}'], f'P{n}')
            s.p.ds_after = prev
            if n == NE + 1: s.owr(3); s.ld_wo(NE + 7, b)
            if n == NE + 2: s.gather(3, 1)
            if f'P{n}' in opt.get('rf', '').split(','): s.refresh(207, 209)
            s.tagnext = f'P{n}'
            for q, nl in enumerate((1, 2, 3, 0) if n == NE + 3 else range(4)):
                for pri, pos, f in sorted(ev.get(4 * n + q, []), key=lambda x: x[0]): f()
                dq += [(n + 7, b, p) for p in range(4)] if q == 0 and n + 7 < 32 else []
                ph = (4 * n + q) % 16
                for _ in range(min(len(dq), int(dpat[ph]) if n >= NE + 4 else 1)):
                    t_, b_, p_ = dq.pop(0); s.here(s.ld_wo(t_, b_, [p_]))
                s.pp(n, nl)
        s.p.DMAGAP = 0
        for pri, pos, f in sorted(tail, key=lambda x: (x[1], x[0])): f()
        s.outfin()
        st = opt.get('stamp')
        if st == '1': s.p.stampset = set([f'Q{n}' for n in range(0, 16, 2)] + [f'A{n}' for n in range(33)] + [f'P{n}' for n in range(2, 31, 2)])
        if st == '2': s.p.stampset = set('Q0 A0 A1 A2 A7 A10 A15 A18 A23 A26 A32 P12 P30'.split())
        if st == '3': s.p.stampset = set(['A32'] + [f'P{n}' for n in range(31)])
        for k in ('DSSPACE', 'TTMARGIN', 'SAFE'):
            if k in opt: setattr(s.p, k, float(opt[k]))
        return s.p.schedule(stamp=(TMP if st else None))

MACROS = """.macro M d,a,b,c
v_mfma_f32_16x16x32_bf16 \\d,\\a,\\b,\\c
.endm
.macro T d,a,o
ds_read_b64_tr_b16 \\d,\\a offset:\\o
.endm
.macro R d,a,o
ds_read_b128 \\d,\\a offset:\\o
.endm
.macro E d
v_exp_f32_e64 \\d,\\d
.endm
.macro C d,a,b
v_cvt_pk_bf16_f32 \\d,\\a,\\b
.endm
.macro D v,r,s,o
buffer_load_dwordx4 \\v,\\r,\\s offen offset:\\o lds
.endm
.macro Dn v,r,s,o
buffer_load_dwordx4 \\v,\\r,\\s offen offset:\\o nt lds
.endm
"""

def setup_entry(opt):
    L = []; a = L.append
    a('s_cmp_ge_u32 s2,256'); a('s_cbranch_scc0 L_go'); a('s_endpgm'); a('L_go:')
    if opt.get('stamp'): a('s_memtime s[60:61]'); a('s_memrealtime s[90:91]')
    a('s_load_dwordx16 s[64:79],s[0:1],0')
    a('s_load_dwordx8 s[80:87],s[0:1],64')
    a('s_load_dwordx2 s[88:89],s[0:1],96')
    a('s_getpc_b64 s[48:49]'); a('s_bfe_u32 s3,s2,0x20003'); a('s_lshl_b32 s3,s3,15')
    a('v_lshl_add_u32 v1,v0,7,s3'); a('v_min_u32 v1,L_end0-L_go-64,v1'); a(f'global_load_dword v{PRW},v1,s[48:49] ' + opt.get('cpol', ''))
    if opt.get('stag'):
        a('s_bfe_u32 s3,s2,0x30003' if opt.get('stagm', 'c') == 'c' else 's_and_b32 s3,s2,7'); a('L_stag:'); a('s_cmp_eq_u32 s3,0'); a('s_cbranch_scc1 L_main'); a('s_sleep %s' % opt['stag']); a('s_sub_u32 s3,s3,1'); a('s_branch L_stag')
    a('s_branch L_main')
    return L

def setup_main(opt):
    L = []; a = L.append
    a('s_and_b32 s3,s2,7'); a('s_lshr_b32 s4,s3,2')
    if opt.get('map', 'a') == 'a':
        a('s_and_b32 s3,s3,3'); a('s_lshl_b32 s3,s3,1'); a('s_bfe_u32 s5,s2,0x10003'); a('s_or_b32 s5,s5,s3')
        a('s_lshr_b32 s6,s2,4')
    else:
        a('s_bfe_u32 s3,s2,0x10001'); a('s_lshl_b32 s3,s3,2'); a('s_bfe_u32 s5,s2,0x20003'); a('s_or_b32 s5,s5,s3')
        a('s_and_b32 s3,s2,1'); a('s_lshl_b32 s3,s3,3'); a('s_lshr_b32 s6,s2,5'); a('s_or_b32 s6,s6,s3')
    a('v_lshrrev_b32 v1,6,v0'); a('v_and_b32 v0,63,v0'); a(f's_mov_b32 s{sFLAG},0'); a(f'v_readfirstlane_b32 s{sW},v1')
    a('v_and_b32 v2,15,v0')
    a('v_lshrrev_b32 v3,4,v0')
    a('v_lshrrev_b32 v4,3,v0')
    a('v_and_b32 v5,7,v0'); a('v_and_b32 v6,6,v4'); a('v_xor_b32 v5,v5,v6'); a('v_lshlrev_b32 v5,4,v5')
    a(f's_lshl_b32 s{sW4K},s{sW},12'); a(f's_lshl_b32 s{sW1K},s{sW},10'); a(f's_mov_b32 s{sTMP+9},4096'); a(f's_mov_b32 s{sCS},{CSCALE:#x}')
    a('v_lshl_add_u32 v5,v4,10,v5')
    a(f'v_lshl_add_u32 v{vDX},v1,15,v5')
    a('v_and_b32 v6,1,v1'); a('v_lshrrev_b32 v7,1,v1')
    a('v_lshl_add_u32 v5,v6,13,v5'); a('v_lshl_add_u32 v5,v7,7,v5'); a(f'v_add_u32 v{vDXr},131072,v5')
    a('v_lshlrev_b32 v8,1,v3'); a('v_xor_b32 v8,v2,v8')
    a('v_lshlrev_b32 v9,4,v8'); a('v_lshl_add_u32 v9,v3,8,v9'); a(f'v_lshl_add_u32 v{vDK},v1,12,v9'); a(f'v_xor_b32 v{vDK+1},128,v{vDK}')
    a('v_and_b32 v9,12,v8'); a('v_bfe_u32 v10,v8,1,1'); a('v_or_b32 v9,v9,v10'); a('v_and_b32 v10,1,v8'); a('v_lshl_or_b32 v9,v10,1,v9')
    a('v_lshlrev_b32 v9,4,v9')
    a('v_lshl_add_u32 v10,v6,2,v3'); a('v_lshl_add_u32 v10,v7,5,v10')
    a(f'v_lshl_add_u32 v{vDW},v10,13,v9'); a(f'v_xor_b32 v{vDW+1},128,v{vDW}'); a(f'v_add_u32 v{vDW+1},64512,v{vDW+1}')
    if opt.get('rotq', 'bh') == 'b': a('s_and_b32 s3,s6,3')
    elif opt.get('rotq', 'bh') == 'bh': a('s_lshl_b32 s3,s5,1'); a('s_add_u32 s3,s3,s6'); a('s_and_b32 s3,s3,3')
    elif opt['rotq'] == 'bh1': a('s_add_u32 s3,s5,s6'); a('s_and_b32 s3,s3,3')
    else: a('s_mov_b32 s3,0')
    a('s_lshl_b32 s3,s3,8')
    for D in range(8):
        a(f's_and_b32 s{sTX+D},s3,0x380'); a(f's_lshl_b32 s{sTW+D},s{sTX+D},12')
        if D < 7: a('s_add_u32 s3,s3,128')
    for d, n in ((sX, 147456), (sK, 524288), (sV, 524288), (sWo, 524288), (sWS, 147456)): a(f's_mov_b32 s{d+2},{n}')
    for d in (sX, sK, sV, sWq, sWo, sWS): a(f's_mov_b32 s{d+3},0x20000')
    a(f's_mul_i32 s{sTMP},s6,147456')
    a('s_lshl_b32 s7,s6,3'); a('s_add_u32 s7,s7,s5'); a(f's_lshl_b32 s{sTMP+1},s7,19' if not opt.get('nohbm') else f's_mov_b32 s{sTMP+1},0')
    a(f's_lshl_b32 s{sTMP+2},s5,10'); a(f's_sub_u32 s{sWq+2},4194304,s{sTMP+2}')
    a(f's_lshl_b32 s{sTMP+3},s5,19')
    a('s_lshl_b32 s3,s4,7'); a('s_add_u32 s7,s7,s3'); a('s_mul_i32 s7,s7,147456')
    a('s_cmp_eq_u32 s4,0')
    a('s_waitcnt lgkmcnt(0)')
    for d, x, y in ((sX, 64, 74), (sK, 66, 76), (sV, 68, 78), (sWq, 70, 80), (sWo, 72, 82)):
        a(f's_cselect_b64 s[{d}:{d+1}],s[{x}:{x+1}],s[{y}:{y+1}]')
    def adv(d, off): a(f's_add_u32 s{d},s{d},s{off}'); a(f's_addc_u32 s{d+1},s{d+1},0')
    adv(sX, sTMP); adv(sWq, sTMP + 2); adv(sK, sTMP + 1); adv(sV, sTMP + 1); adv(sWo, sTMP + 3)
    if opt.get('ik', '1') != '1':
        a(f's_add_u32 s{sWS},s88,s7'); a(f's_addc_u32 s{sWS+1},s89,0')
        return L
    a('s_lshl_b32 s3,s4,4'); a('s_add_u32 s3,s3,s6')
    a('s_mul_i32 s7,s3,1179648'); a(f's_add_u32 s{sWS},s88,s7'); a(f's_addc_u32 s{sWS+1},s89,0'); a(f's_mov_b32 s{sWS+2},1179648')
    a('s_lshl_b32 s7,s3,15'); a(f's_add_u32 s7,s7,{FLOFF}'); a(f's_add_u32 s{sFL},s88,s7'); a(f's_addc_u32 s{sFL+1},s89,0')
    a(f's_mov_b32 s{sFL+2},32768'); a(f's_mov_b32 s{sFL+3},0x20000')
    a('s_mul_i32 s7,s6,294912'); a(f's_lshl_b32 s{sTMP},s4,10'); a(f's_add_u32 s7,s7,s{sTMP}'); a(f's_add_u32 s{sTMP},s5,s6'); a(f's_and_b32 s{sTMP},s{sTMP},7'); a(f's_lshl_b32 s{sTMP},s{sTMP},7'); a(f's_add_u32 s7,s7,s{sTMP}')
    a(f's_add_u32 s{sOUT},s84,s7'); a(f's_addc_u32 s{sOUT+1},s85,0'); a(f's_mov_b32 s{sOUT+2},{143*2048+128}'); a(f's_mov_b32 s{sOUT+3},0x20000')
    a('s_lshl_b32 s7,s3,3'); a(f's_add_u32 s{sDBG},s86,s7'); a(f's_addc_u32 s{sDBG+1},s87,0'); a(f's_mov_b32 s{sDBG+2},16'); a(f's_mov_b32 s{sDBG+3},0x20000')
    a(f's_mul_i32 s{sHS},s5,18432'); a(f's_mul_i32 s{sHD},s5,147456')
    a(f's_lshl_b32 s{sFO},s5,12'); a(f's_add_u32 s{sFO},s{sFO},s{sW1K}')
    a('v_lshlrev_b32 v20,4,v0')
    for i in range(4): a(f'v_mov_b32 v{16+i},0')
    a(f'buffer_store_dwordx4 v[16:19],v20,s[{sFL}:{sFL+3}],s{sFO} offen sc1')
    return L

def sizes(lines):
    import subprocess, re
    src = '.amdgcn_target "amdgcn-amd-amdhsa--gfx950"\n.text\n' + MACROS + '\n'.join(l for l in lines if l[0] != '@') + '\n'
    open('_sz.s', 'w').write(src)
    subprocess.run(['clang', '-x', 'assembler', '-target', 'amdgcn-amd-amdhsa', '-mcpu=gfx950', '-c', '_sz.s', '-o', '_sz.o'], check=True)
    d = subprocess.run(['llvm-objdump', '-d', '--mcpu=gfx950', '_sz.o'], capture_output=True, text=True).stdout
    sz = [4 * len(m.group(1).split()) for m in re.finditer(r'// [0-9A-F]+: ([0-9A-F ]+)', d)]
    it = iter(sz)
    return [0 if (l[0] == '@' or l.endswith(':')) else next(it) for l in lines]

def paginate(lines, plan, ool):
    sz = sizes(lines + ool + ['L_end0:'])[:len(lines)]
    total = sum(sz); npages = (total + 1200) // 4096
    out = []; pos = 0; back = {}; nxt = 1; done = set()
    for k, (l, z) in enumerate(zip(lines, sz)):
        if l[0] == '@':
            r = plan.get(l[1:], 0)
            nxt = max(nxt, pos // 4096 + 1)
            if r and nxt <= npages:
                out.append(f's_mov_b32 s{sFLAG},1'); pos += 4
                for j in range(r):
                    lab = f'L_bk{l[1:]}_{j}'
                    for w in range(4):
                        if nxt > npages: break
                        out += [f's_cmp_eq_u32 s{sW},{w}', f's_cbranch_scc1 L_pg{nxt}']; pos += 8
                        back[nxt] = lab; nxt += 1
                    out.append(lab + ':')
                out.append(f's_mov_b32 s{sFLAG},0'); pos += 4
                print(f';   {l[1:]} at page {pos//4096}: touched up to page {nxt-1}')
            continue
        out.append(l); pos += z
        pg = pos // 4096
        if pg in back and pg not in done and (l[:2] == 'M ' or pos % 4096 >= 40) and not l.startswith(('s_cmp', 's_getpc')):
            if pos % 4096 > 56: print('; late stub', pg, pos % 4096)
            out += [f'L_pg{pg}:', f's_cmp_eq_u32 s{sFLAG},1', f's_cbranch_scc1 {back[pg]}']; pos += 8; done.add(pg)
    for pg in back:
        if pg not in done: out += [f'L_pg{pg}:', f's_cmp_eq_u32 s{sFLAG},1', f's_cbranch_scc1 {back[pg]}']
    return out

def setup_late(g):
    V = lambda x: f'v{x}'
    def op(t, rd, wr): g.valu(t, [V(x) for x in rd], [V(x) for x in wr])
    op('v_and_b32 v8,6,v2', [2], [8]); op('v_xor_b32 v8,v3,v8', [3, 8], [8]); op('v_lshlrev_b32 v8,4,v8', [8], [8])
    op('v_lshl_add_u32 v8,v2,7,v8', [2, 8], [8])
    op(f'v_add_u32 v{vXr},{XR},v8', [8], [vXr]); op(f'v_xor_b32 v{vXr+1},64,v{vXr}', [vXr], [vXr + 1])
    op('v_lshl_add_u32 v8,v1,12,v8', [1, 8], [8])
    op(f'v_add_u32 v{vX},{XWIN},v8', [8], [vX]); op(f'v_xor_b32 v{vX+1},64,v{vX}', [vX], [vX + 1])
    op('v_lshrrev_b32 v9,2,v0', [0], [9])
    op('v_bfe_u32 v10,v0,1,1', [0], [10]); op('v_lshl_add_u32 v10,v1,2,v10', [1, 10], [10])
    op('v_and_b32 v11,7,v9', [9], [11]); op('v_lshlrev_b32 v11,1,v11', [11], [11]); op('v_xor_b32 v10,v10,v11', [10, 11], [10])
    op('v_lshlrev_b32 v10,4,v10', [10], [10]); op('v_lshl_add_u32 v10,v9,8,v10', [9, 10], [10])
    op('v_and_b32 v11,1,v0', [0], [11]); op('v_lshl_add_u32 v10,v11,3,v10', [10, 11], [10])
    op(f'v_add_u32 v{vV},{VS[0]},v10', [10], [vV])
    for ul in range(1, 8):
        op(f'v_xor_b32 v{vV+ul},{ul*32},v{vV}', [vV], [vV + ul])
    op('v_lshl_add_u32 v12,v1,2,v3', [1, 3], [12]); op('v_and_b32 v13,7,v2', [2], [13]); op('v_lshlrev_b32 v13,1,v13', [13], [13])
    op('v_xor_b32 v12,v12,v13', [12, 13], [12]); op('v_lshlrev_b32 v12,4,v12', [12], [12])
    op(f'v_lshl_add_u32 v{vK},v2,8,v12', [2, 12], [vK]); op(f'v_lshl_add_u32 v{vKr},v1,12,v{vK}', [1, vK], [vKr])
    for sl in range(1, 4):
        op(f'v_xor_b32 v{vK+sl},{sl*64},v{vK}', [vK], [vK + sl]); op(f'v_xor_b32 v{vKr+sl},{sl*64},v{vKr}', [vKr], [vKr + sl])
    op('v_lshlrev_b32 v14,4,v0', [0], [14]); op(f'v_add_u32 v{vL16},{PR},v14', [14], [vL16])
    op(f'v_lshl_add_u32 v15,v7,10,v{vL16}', [7, vL16], [15]); op(f'v_lshl_add_u32 v{vPw},v6,3,v15', [6, 15], [vPw])
    op('v_lshl_add_u32 v14,v1,10,v14', [1, 14], [14]); op(f'v_add_u32 v{vGw},{GB},v14', [14], [vGw])
    op('v_mov_b32 v15,0x3f803f80', [], [15])
    for i in range(4): g.awr(aONE + i, 15)

def kd(name, vg, ao, sg=102):
    return f""".amdhsa_kernel {name}
  .amdhsa_next_free_vgpr {vg}
  .amdhsa_next_free_sgpr {sg}
  .amdhsa_accum_offset {ao}
  .amdhsa_group_segment_fixed_size 0
  .amdhsa_kernarg_size 104
  .amdhsa_user_sgpr_count 2
  .amdhsa_user_sgpr_kernarg_segment_ptr 1
  .amdhsa_system_sgpr_workgroup_id_x 1
.end_amdhsa_kernel
"""

def generate(opt):
    g = G(opt)
    setup_late(g)
    body, st = g.build()
    hdr = open('cdna_kernels/' + KN + '.s.ref').read().split('; Override launch')[0]
    s = hdr
    if g.ik: s += f'; @launch grid=(256,1,1) block=(256,1,1) lds={LDS_BYTES}\n'
    else:
        s += f'; @launch kernel={KN}_kernel grid=(256,1,1) block=(256,1,1) lds={LDS_BYTES}\n'
        s += f'; @launch kernel=reduce_kernel grid=(256,1,1) block=(256,1,1) lds=0\n'
    s += '.amdgcn_target "amdgcn-amd-amdhsa--gfx950"\n.text\n' + MACROS.replace(' nt lds', ' ' + opt.get('kvpol', 'nt').replace('+', ' ') + ' lds')
    s += f'.globl {KN}_kernel\n.p2align 8\n.type {KN}_kernel,@function\n{KN}_kernel:\n'
    tail = []
    if opt.get('stamp'):
        n = st['nstamp']
        tail += ['s_memtime s[62:63]', 's_waitcnt vmcnt(0) lgkmcnt(0)']
        for j, r in enumerate((60, 62, 90)): tail.append(f'v_writelane_b32 v{TMP+j},s{r},{n}')
        n += 1
        tail += ['s_memtime s[60:61]', 's_memrealtime s[90:91]', 's_waitcnt lgkmcnt(0)']
        for j, r in enumerate((60, 62, 90)): tail.append(f'v_writelane_b32 v{TMP+j},s{r},{n}')
        tail += ['s_add_u32 s8,s88,0x4000000', 's_addc_u32 s9,s89,0', 's_mov_b32 s10,0x1000000',
                 f's_lshl_b32 s3,s2,2', f's_add_u32 s3,s3,s{sW}', 's_mul_i32 s3,s3,1536',
                 f'v_subrev_u32 v0,{PR},v{vL16}', 'v_lshrrev_b32 v0,2,v0']
        for j in range(3): tail.append(f'buffer_store_dword v{TMP+j},v0,s[8:11],s3 offen offset:{j*512}')
        print('; nstamp', n + 1)
    plan = dict((x.split(':')[0], int(x.split(':')[1])) for x in opt.get('touch', 'Q0:3,A14:2,A25:2').split(',') if x)
    body = [x for l in body for x in l.split('\n')]
    pre = setup_main(opt)
    if opt.get('fine'):
        k = [56]
        def st_(): k[0] += 1; return ['s_memrealtime s[62:63]', 's_waitcnt lgkmcnt(0)', f'v_writelane_b32 v{TMP+2},s62,{k[0]-1}']
        i = pre.index('s_waitcnt lgkmcnt(0)')
        pre = pre[:i + 1] + ['s_cselect_b32 s59,1,0'] + st_() + ['s_cmp_eq_u32 s59,1'] + pre[i + 1:] + st_()
        nb_ = []; nd = 0
        for l in body:
            if l == '@Q0': nb_ += st_() + [l] + st_(); continue
            nb_.append(l)
            if l[:2] in ('D ', 'Dn'):
                nd += 1
                if nd in (9, 17): nb_ += st_()
        body = nb_
    main = paginate(pre + body, plan, g.ool)
    s += '\n'.join(setup_entry(opt)) + '\n.p2align 12\nL_main:\n' + '\n'.join(main + tail) + '\nL_end0:\ns_endpgm\n' + '\n'.join(g.ool) + '\n'
    if not g.ik: s += '.globl reduce_kernel\n.p2align 8\n.type reduce_kernel,@function\nreduce_kernel:\n' + '\n'.join(reduce_kernel()) + '\n'
    s += '.section .rodata,"a"\n.p2align 6\n' + kd(KN + '_kernel', 512, 256)
    if not g.ik: s += '.p2align 6\n' + kd('reduce_kernel', 224, 224, 32)
    return s

if __name__ == '__main__':
    opt = dict(a.split('=') for a in sys.argv[2:])
    open(sys.argv[1], 'w').write(generate(opt))
```

```python
import heapq

class Op:
    __slots__ = ('kind', 'text', 'rd', 'wr', 'crd', 'cost', 'preds', 'succs', 'idx', 'dl', 'npred', 'pos', 't',
                 'k', 'soft', 'seq', 'prio', 'tag')
    def __init__(s, kind, text, rd=(), wr=(), crd=(), cost=1, prio=None, tag=None):
        s.kind = kind; s.text = text; s.rd = tuple(rd); s.wr = tuple(wr); s.crd = tuple(crd)
        s.cost = cost; s.preds = {}; s.succs = []; s.pos = None; s.t = None; s.prio = prio; s.tag = tag
        s.seq = None

VALU = ('valu', 'trans', 'perm')
DS = ('dsr', 'dsw')
VM = ('dma', 'store', 'load')

def regs(c, a, n=1): return [f'{c}{a+i}' for i in range(n)]

class Prog:
    def __init__(s):
        s.ops = []; s.lastw = {}; s.readers = {}
        s.last_salu = None; s.last_vm = None; s.last_bar = None; s.ds_since_bar = []; s.ds_after = None
        s.stampset = None; s.extra_gap = 0; s.ALT = 1.5; s.DSSPACE = 0.8; s.TTMARGIN = 8.0
        s.DSLAT = 7.0; s.DMAGAP = 64; s.SAFE = 128
    def edge(s, a, b, states=0, lat=0, wait=None, dgap=0.0):
        if a is b: return
        e = b.preds.get(a)
        if e is None:
            b.preds[a] = [states, lat, wait, dgap]; a.succs.append(b)
        else:
            e[0] = max(e[0], states); e[1] = max(e[1], lat); e[2] = e[2] or wait; e[3] = max(e[3], dgap)
    def add(s, op):
        op.idx = len(s.ops)
        k = op.kind
        for r in op.rd:
            p = s.lastw.get(r)
            if p is not None: s.raw(p, op, r)
        for r in op.wr:
            p = s.lastw.get(r)
            if p is not None: s.waw(p, op, r)
            for q in s.readers.get(r, ()): s.war(q, op, r)
        for r in op.wr:
            s.lastw[r] = op; s.readers[r] = []
        for r in op.rd:
            if r not in op.wr or True: s.readers.setdefault(r, []).append(op)
        if k == 'salu':
            if s.last_salu: s.edge(s.last_salu, op, dgap=1.0)
            s.last_salu = op
        if k in VM:
            if s.last_vm: s.edge(s.last_vm, op, lat=s.DMAGAP + s.extra_gap, dgap=1.0)
            s.extra_gap = 0
            s.last_vm = op
        if k in DS:
            b = s.ds_after or s.last_bar
            if b: s.edge(b, op, dgap=0.5)
            s.ds_since_bar.append(op)
        if k == 'bar':
            for d in s.ds_since_bar: s.edge(d, op, lat=88, wait='lgkm', dgap=5.5)
            if s.last_bar: s.edge(s.last_bar, op)
            s.ds_since_bar = []; s.last_bar = op
        s.ops.append(op)
        return op
    def raw(s, p, c, r):
        pk, ck = p.kind, c.kind
        if pk == 'mfma':
            if ck == 'mfma':
                if r in c.crd and p.wr == c.crd: s.edge(p, c)
                else: s.edge(p, c, states=8)
            else: s.edge(p, c, states=8, lat=44, dgap=0)
        elif pk in VALU:
            if ck == 'mfma': s.edge(p, c, states=2, dgap=1.0)
            elif ck == 'perm': s.edge(p, c, states=2, lat=12, dgap=0.5 * p.cost + 0.5)
            elif ck == 'salu': s.edge(p, c, states=4, lat=20, dgap=1.5)
            elif ck in VALU: s.edge(p, c, states=(1 if pk == 'trans' else (2 if r[0] == 's' or r == 'vcc' else 0)), lat=4 * p.cost + 4, dgap=0.5 * p.cost)
            else: s.edge(p, c, states=(5 if r[0] == 's' else 1), lat=12, dgap=1.0)
        elif pk == 'dsr':
            s.edge(p, c, lat=96, wait='lgkm', dgap=s.DSLAT)
        elif pk in ('dma', 'load', 'store'):
            s.edge(p, c, wait='vm', dgap=2.0, lat=(1000 if pk == 'load' else 0))
        elif pk == 'salu':
            s.edge(p, c, states=(1 if r == 'm0' else 0), dgap=0.0)
        else:
            s.edge(p, c)
    def waw(s, p, c, r):
        pk, ck = p.kind, c.kind
        if pk == 'mfma':
            if ck == 'mfma': s.edge(p, c)
            else: s.edge(p, c, states=8, lat=44)
        elif pk == 'dsr': s.edge(p, c, lat=96, wait='lgkm', dgap=s.DSLAT)
        elif pk == 'load': s.edge(p, c, wait='vm')
        elif pk in VALU and ck == 'mfma': s.edge(p, c, states=2, dgap=1.0)
        else: s.edge(p, c)
    def war(s, q, c, r):
        qk, ck = q.kind, c.kind
        if qk == 'mfma' and r in q.crd and ck != 'mfma': s.edge(q, c, states=3)
        elif qk == 'store' and r[0] in 'va': s.edge(q, c, states=2, dgap=0.5)
        elif qk == 'dsr' and r[0] == '$': s.edge(q, c, lat=96, wait='lgkm', dgap=s.DSLAT)
        else: s.edge(q, c, dgap=(0.5 if ck == 'mfma' else 0.0))

    def schedule(s, vm_before=0, verbose=True, stamp=None):
        ops = s.ops
        k = 0
        for o in ops:
            if o.kind == 'mfma': o.k = k; k += 1
            else: o.k = k
        nm = k
        cap = {}
        for it in range(3):
            for o in reversed(ops):
                if o.kind == 'mfma': o.dl = float(o.k)
                else:
                    d = None
                    for c in o.succs:
                        x = c.dl - c.preds[o][3]
                        if d is None or x < d: d = x
                    if d is None: d = o.k + 24.0
                    if o.prio is not None: d = min(d, o.k + o.prio)
                    if o in cap: d = min(d, cap[o])
                    o.dl = d
            if it == 2 or not s.DSSPACE: break
            nx = 1e18
            for o in sorted((o for o in ops if o.kind in DS), key=lambda o: (-o.dl, -o.idx)):
                nx = min(o.dl, nx - s.DSSPACE); cap[o] = nx
        for o in ops: o.npred = len(o.preds); o.soft = 0
        ready = []
        out = []
        st = dict(pos=0, t=0, ds=0, vm=vm_before, dscov=0, vmcov=0, nops=0, extra=0, waits=0, stall=0, nstamp=0)
        dst = []
        def release(o):
            for c in o.succs:
                e = c.preds[o]
                c.soft = max(c.soft, o.t + e[1])
                c.npred -= 1
                if c.npred == 0 and c.kind != 'mfma': ready.append(c)
        def hard_gap(o, pos):
            n = 0
            for p, e in o.preds.items():
                if e[0]: n = max(n, e[0] - (pos - p.pos - 1))
            return n
        def need_wait(o):
            lg = vm = None
            for p, e in o.preds.items():
                if p.pos is None: continue
                if e[2] == 'lgkm' and p.seq > st['dscov']: lg = max(lg or 0, p.seq)
                if e[2] == 'vm' and p.seq > st['vmcov']: vm = max(vm or 0, p.seq)
            return lg, vm
        def emit_raw(text, cost):
            out.append(text); st['pos'] += 1; st['t'] += cost
        def emit_wait(lg, vm, cost):
            parts = []
            if vm is not None:
                n = min(st['vm'] - vm, 63); parts.append(f'vmcnt({n})'); st['vmcov'] = st['vm'] - n
            if lg is not None:
                while lg < st['ds'] and dst[lg] + s.SAFE <= st['t']: lg += 1
                n = min(st['ds'] - lg, 15); parts.append(f'lgkmcnt({n})'); st['dscov'] = st['ds'] - n
            emit_raw('s_waitcnt ' + ' '.join(parts), cost); st['waits'] += 1
        def emit(o, cost):
            lg, vm = need_wait(o)
            if o.kind == 'bar' and o.tag: out.append('@' + o.tag)
            if o.kind == 'bar' and stamp is not None and (s.stampset is None or o.tag in s.stampset):
                emit_raw('s_memtime s[62:63]', 4); lg = st['ds']
            if lg is not None or vm is not None:
                emit_wait(lg, vm, 4)
            if o.soft > st['t'] and (o.kind in ('mfma', 'bar') or lg is not None or vm is not None):
                st['stall'] += o.soft - st['t']; st['t'] = o.soft
            n = hard_gap(o, st['pos'])
            if n > 0:
                out.append(f's_nop {n-1}'); st['pos'] += n; st['t'] += 4 * n; st['nops'] += n
            o.pos = st['pos']; o.t = st['t']
            if o.kind in DS: st['ds'] += 1; o.seq = st['ds']; dst.append(st['t'])
            if o.kind in VM: st['vm'] += 1; o.seq = st['vm']
            emit_raw(o.text, cost)
            if o.kind == 'bar' and stamp is not None and (s.stampset is None or o.tag in s.stampset):
                n = st['nstamp']; st['nstamp'] += 1
                for j, r in enumerate((60, 62, 90)): emit_raw(f'v_writelane_b32 v{stamp+j},s{r},{n}', 4)
                emit_raw('s_memtime s[60:61]', 4); emit_raw('s_memrealtime s[90:91]', 4)
            release(o)
        for o in ops:
            if o.npred == 0 and o.kind != 'mfma': ready.append(o)
        mf = [o for o in ops if o.kind == 'mfma']
        order = {'dsr': 0, 'dsw': 1, 'dma': 2, 'load': 2, 'store': 3, 'valu': 4, 'trans': 4, 'perm': 4}
        def forced(target):
            while (target.npred > 0 if target is not None else ready):
                assert ready, 'deadlock'
                lim = (target.k + 0.01) if target is not None else 1e18
                cand = [o for o in ready]
                t = st['t']; pos = st['pos']
                good = [o for o in cand if o.soft <= t + 2 and hard_gap(o, pos) == 0]
                if good: o = min(good, key=lambda o: (o.dl, o.idx))
                else:
                    urg = [o for o in cand if o.dl <= lim] or cand
                    o = min(urg, key=lambda o: (max(o.soft - t, 4 * hard_gap(o, pos)), o.dl))
                ready.remove(o)
                c = 20 if o.kind == 'bar' else 4 * o.cost
                emit(o, c); st['extra'] += c
        marks = []; prevds = 0; lastbar = 0; st['idle'] = 0
        for i, m in enumerate(mf):
            forced(m)
            if i and st['t'] < mf[i-1].t + 16: st['t'] = mf[i-1].t + 16
            emit(m, 4)
            if m.tag: marks.append((m.tag, st['t'], i))
            t0 = m.t; nxt = mf[i+1] if i + 1 < nm else None
            scal = None
            bars = [o for o in ready if o.kind == 'bar' and (o.soft <= t0 + 6 or o.dl <= i)]
            if bars:
                b = bars[0]; ready.remove(b)
                if b.cost > 1:
                    if st['t'] < t0 + 8: st['t'] = t0 + 8
                    while st['t'] < lastbar + b.cost:
                        c2 = [o for o in ready if o.kind in VALU and o.soft <= st['t'] + 2 and hard_gap(o, st['pos']) == 0 and need_wait(o) == (None, None)]
                        if not c2: break
                        o = min(c2, key=lambda o: (o.dl, o.idx)); ready.remove(o); emit(o, 4 * o.cost)
                    st['idle'] += max(0, lastbar + b.cost - st['t'])
                emit(b, 16); st['extra'] += 16; lastbar = st['t']
                scal = True
            tv = max(st['t'], t0 + 8)
            pick = []; slots = 0
            cand = [o for o in ready if o.kind not in ('salu', 'bar') and o.soft <= tv + 2 and hard_gap(o, st['pos']) == 0]
            cand.sort(key=lambda o: ((-1e9 if o.kind in ('dma', 'load') else o.dl), o.idx))
            if cand:
                first = cand[0]
                ones = [o for o in cand if o.cost == 1]
                twos = [o for o in cand if o.cost >= 2]
                isds = lambda o: o.kind in DS
                if first.cost >= 2 and s.ALT and prevds == 0 and first.dl > i + s.ALT and first.kind in VALU and len(ones) >= 2 and any(isds(o) and o.dl < i + s.TTMARGIN for o in ones):
                    first = [o for o in ones if isds(o)][0]; ones.remove(first); ones.insert(0, first)
                if first.cost >= 2: pick = [first]
                elif len(ones) >= 2:
                    lim = s.TTMARGIN if prevds < 2 or not s.ALT else s.ALT
                    sec = [o for o in ones[1:] if not (isds(o) and isds(first) and o.dl > i + lim)]
                    if sec: pick = [first, sec[0]]
                    elif twos and first.dl > i + lim: pick = [twos[0]]
                    else: pick = [first]
                elif twos and first.dl > i + 2 and first.kind not in ('dma', 'load'): pick = [twos[0]]
                else: pick = [first]
                for o in cand:
                    if o not in pick and o.dl <= i + 0.25 and o.kind not in VM: pick.append(o)
            pick.sort(key=lambda o: (order[o.kind], o.dl, o.idx))
            prevds = sum(o.kind in DS for o in pick)
            lg = vm = None
            for o in pick + ([nxt] if nxt is not None else []):
                a, b2 = need_wait(o)
                if o is nxt and nxt.soft > t0 + 16 + 12 and False: continue
                if a is not None: lg = max(lg or 0, a)
                if b2 is not None: vm = max(vm or 0, b2)
            if lg is not None or vm is not None:
                emit_wait(lg, vm, 4)
                if scal: st['extra'] += 4
                scal = True
            sal = [o for o in ready if o.kind == 'salu' and hard_gap(o, st['pos']) == 0]
            if sal and (not scal or sum(o.cost for o in pick) < 2 or sal[0].dl <= i):
                o = sal[0]; ready.remove(o); emit(o, 4)
            if st['t'] < t0 + 8: st['t'] = t0 + 8
            for o in pick:
                ready.remove(o); emit(o, 4 * o.cost)
            if st['t'] > t0 + 16: st['extra'] += 0
        forced(None)
        assert all(o.pos is not None for o in ops)
        if verbose:
            print(f"; sched: mfma={nm} instrs={st['pos']} est_cycles={st['t']} ideal={16*nm} nops={st['nops']} waits={st['waits']} stall={st['stall']} idle={st['idle']}")
            prev = None
            for tag, t, i in marks:
                if prev: print(f";   {prev[0]}: {t-prev[1]} cyc, {i-prev[2]} mfma")
                prev = (tag, t, i)
        return out, st
```

```python
import sys, struct, math
from sched import *

KN = 'concat_heads__mha_block_cached__gqa_block_cached__near_ridge'
def f2u(x): return struct.unpack('<I', struct.pack('<f', x))[0]
CSCALE = f2u(math.log2(math.e) / math.sqrt(128.0))

KS = [0, 16384, 32768]; XS = [49152, 65536]
VS = [81920, 98304]; WS_ = [114688, 131072]
GB = 147456; XR = GB + 4096; PR = GB + 12288
LDS_BYTES = 163840
XWIN = 32768
OA = 0; QA = 72; SB = 144; SR = 160; PB = 164; MB = 196; PRW = 208
vK = 210; vKr = 214; vV = 218
vX = 226; vXr = 228; vDW = 230; vSP = 232; vDXr = 240
vPw = 242; vL16 = 243; vGw = 244; vDK = 245; vDX = 247; TMP = 248; GT = 251; vF = 254; vDV = 254; vM = 238
vV0 = MB + 4
vDUM = 241
vPoB = 226
vPoA = vK
vSt = 200; vOut = 202; vZ = 205; vOne = 206; SUM = OA + 36; vTW = 164
def LAND(c): return [OA, 180, SB][c % 3]
FLOFF = 40 << 20
PACC = [QA, QA + 36, SB, QA, QA + 36, QA, QA + 36, SUM]
SEQ = [0, 8, 1, 9, 2, 10, 3, 4, 11, 5, 12, 6, 7, 13, 14, 15]
def RG(u): return 48 * u
aONE = 192; aPR = 196; aL = 204; aPOOL = 216
sK = 8; sV = 12; sWq = 16; sX = 20; sWo = 24; sWS = 28; sOUT = 32
sT = 64; sW = 44; sW4K = 45; sW1K = 46; sTW = 36; sTX = 92; sTC = 72
sTMP = 50; sFLAG = 47; sCS = 58; sFL = 80; sDBG = 84; sSPIN = 100; sFO = 101; sHS = 48; sHD = 49; sSO = 36; sLO = 38; sPC = 0; sBK = 50; sDVK = 51; sBO = 52; sDO = 53; sDXO = 54; sMK = 55

def rr(c, a, n): return f'{c}[{a}:{a+n-1}]' if n > 1 else f'{c}{a}'

class G:
    def __init__(s, opt):
        s.p = Prog(); s.opt = opt; s.ik = True
        s.NE = NE = int(opt.get('pe', 3))
        s.PT = {0: [(c, u) for c in range(3) for u in range(4)],
                3: [(0, 0), (0, 1), (0, 2), (1, 0), (1, 1), (1, 2), (0, 3), (1, 3)] + [(2, u) for u in range(4)],
                6: [(0, 0), (1, 0), (0, 1), (1, 1), (0, 2), (1, 2), (2, 0), (2, 1), (2, 2), (0, 3), (1, 3), (2, 3)]}[NE] + [(c, u) for c in range(3, 8) for u in range(4)]
        for k in ('DSLAT', 'DMAGAP'):
            if k in opt: setattr(s.p, k, float(opt[k]))
        s.pool = []; s.lastuse = {}; s.tick = 0; s.stmp = 0; s.tagnext = None; s.lastm = None; s.ool = []; s.ck = {}; s.nref = 0; s.tmin = 1; s.tbig = 0; s.nm = 0; s.mfs = []; s.npk = 0; s.late = []
    def mfma(s, d, a, b, c=None):
        D = regs(d[0], d[1], 4)
        if c == 0: ct = '0'; C = []
        else:
            c = c or d; ct = rr(c[0], c[1], 4); C = regs(c[0], c[1], 4)
        o = Op('mfma', f'M {rr(d[0],d[1],4)},{rr(a[0],a[1],4)},{rr(b[0],b[1],4)},{ct}',
               rd=regs(a[0], a[1], 4) + regs(b[0], b[1], 4) + C, wr=D, crd=C, tag=s.tagnext)
        s.tagnext = None
        s.lastm = o; s.nm += 1; s.mfs.append(o)
        return s.p.add(o)
    def valu(s, text, rd, wr, kind='valu', cost=1, prio=None): return s.p.add(Op(kind, text, rd, wr, cost=cost, prio=prio))
    def salu(s, text, rd=(), wr=()): return s.p.add(Op('salu', text, rd, wr))
    def exp(s, v): return s.valu(f'E v{v}', [f'v{v}'], [f'v{v}'], 'trans', 2)
    def cvt(s, d, a, b): return s.valu(f'C v{d},v{a},v{b}', [f'v{a}', f'v{b}'], [f'v{d}'])
    def swap(s, n, a, b): return s.valu(f'v_permlane{n}_swap_b32 v{a},v{b}', [f'v{a}', f'v{b}'], [f'v{a}', f'v{b}'], 'perm', 2)
    def awr(s, a, v): return s.valu(f'v_accvgpr_write_b32 a{a},v{v}', [f'v{v}'], [f'a{a}'])
    def r128(s, d, addr, off, extra=()):
        assert 0 <= off < 65536, off
        return s.p.add(Op('dsr', f'R {rr(d[0],d[1],4)},v{addr},{off}', [f'v{addr}'] + list(extra), regs(d[0], d[1], 4)))
    def rtr(s, d, half, addr, off):
        assert 0 <= off < 65536, off
        return s.p.add(Op('dsr', f'T {rr(d[0],d[1]+2*half,2)},v{addr},{off}', [f'v{addr}'], regs(d[0], d[1] + 2 * half, 2)))
    def alloc(s):
        q = min(s.pool, key=lambda x: s.lastuse.get(x, -1))
        s.tick += 1; s.lastuse[q] = s.tick
        return q
    def stemp(s):
        s.stmp = (s.stmp + 1) % 2
        return 56 + s.stmp
    def bar(s, tiles, tag=None):
        rd = []
        for t in tiles:
            t, _, n = t.partition(':')
            rd += [f'#{t}:{p}' for p in range(1 if t.startswith('xr') else int(n or 4))]
        for r in rd: assert r in s.p.lastw, r
        s.tbig -= 1; s.tbig += 0
        o = s.p.add(Op('bar', 's_barrier', rd, [], tag=tag, prio=float(s.opt.get('BP', -2)), cost=(3000 if s.tbig >= 0 else s.tmin)))
        if s.tmin > 1: s.p.edge(s.mfs[-int(s.opt.get('pin', 8))], o)
        return o
    def dma(s, name, p, voff, srd, off, pol, after, priv=None):
        wr = [f'#{name}:{p}'] + ([f'${priv}:{p}'] if priv is not None else [])
        o = Op('dma', f'{"Dn" if pol and not (s.opt.get("nohbm") and name[0] in "KV") else "D"} v{voff},s[{srd}:{srd+3}],{off}', [f'v{voff}', f's{srd}', 'm0'], wr)
        s.p.add(o)
        if after is not None: s.p.edge(after, o)
        return o
    def ld_kv(s, which, n, after, priv=None, ps=range(4)):
        u, j = n >> 3, n & 7
        slot = KS[n % 3] if which == 'K' else VS[n % 2]
        s.salu(f's_add_u32 m0,s{sW4K},{slot}', wr=['m0'])
        if ps[0] == 0:
            if which == 'K': s.salu(f's_add_u32 s{sK},s{sT+j},{u*131072}', wr=[f's{sK}'])
            else: s.salu(f's_add_u32 s3,s{sT+j},{u*131072}'); s.salu(f's_add_u32 s{sV},s3,s{sDVK}', wr=[f's{sV}'])
        for p in ps: s.dma(f'{which}{n}', p, (vDK if which == 'K' else vDV) + (p & 1), sK if which == 'K' else sV, 1024 * p, 1, after, priv)
    def pslot(s, n): return WS_[n & 1] if n < s.NE + 2 else [WS_[s.NE & 1], WS_[~s.NE & 1], XS[0], KS[2], KS[0], KS[1], VS[0], VS[1]][(n - s.NE) % 8]
    def wslot(s, m): return ([KS[0], KS[1]] + WS_ + VS + [KS[0], KS[1]] + (WS_ + VS) * 2)[SEQ.index(m)] if m < 16 else WS_[m & 1]
    def xslot(s, m): return [XS[0], XS[1], KS[2]][m % 3] if m < 8 else XS[m & 1]
    def ld_w(s, m, after, ps=range(4)):
        u, D = m >> 3, m & 7
        s.salu(f's_add_u32 m0,s{sW4K},{s.wslot(m)}', wr=['m0'])
        for h in range(2):
            q = [p for p in ps if p >> 1 == h]
            if not q: continue
            s.salu(f's_add_u32 s{sWq},s{sTW+D},{u*256+h*129024}', wr=[f's{sWq}'])
            for p in q: s.dma(f'W{m}', p, vDW + (p & 1), sWq, 1024 * p, (m & 7) < int(s.opt.get('wnt', 8) if m < 16 else 0), after)
    def ld_x(s, m, ps=range(4)):
        D = m & 7; loc = s.xslot(m)
        s.salu(f's_add_u32 m0,s{sW4K},{loc}', wr=['m0'])
        for p in ps:
            s.salu(f's_add_u32 s{sX},s{sTX+D},{7168*p}', wr=[f's{sX}'])
            s.dma(f'X{m}', p, vDX, sX, 1024 * p, m < int(s.opt.get('xnt', 8)), None, loc)
    def ld_xr(s, m2, after):
        s.salu(f's_add_u32 m0,s{sW1K},{XR+(m2&1)*4096}', wr=['m0'])
        s.salu(f's_and_b32 s{sX},s{sTX+((2*m2)&7)},0xffffff7f', wr=[f's{sX}'])
        s.dma(f'xr{m2}', 0, vDXr, sX, 0, 2 * m2 < int(s.opt.get('xnt', 8)), after)
    def ld_wo(s, n, after, ps=range(4)):
        c, u = s.PT[n]
        s.salu(f's_add_u32 m0,s{sW4K},{s.pslot(n)}', wr=['m0'])
        for p in ps:
            s.salu(f's_add_u32 s{sWo},s{sTC+c},{u*131072+7168*p}', wr=[f's{sWo}'])
            o = s.dma(f'O{n}', p, vDX, sWo, 1024 * p, 0, after)
        return o
    def xfrag(s, m): return RG([2, 3, 1, 3][(m & 7) >> 1] if m < 16 else m >> 3) + 24 * (m & 1)
    def rd_x(s, m):
        xf = s.xfrag(m); loc = s.xslot(m)
        for sg in range(2):
            for t in range(2):
                s.r128(('a', xf + (t * 2 + sg) * 4), vX + sg, loc - XWIN + t * 2048, [f'${loc}:{2*t}', f'${loc}:{2*t+1}'])
        for sg in range(2):
            s.r128(('a', xf + 16 + sg * 4), vXr + sg, ((m >> 1) & 1) * 4096 + (m & 1) * 2048)
    def qp(s, m, ul):
        acc = OA if m >> 3 == 1 else QA
        xf = s.xfrag(m); slot = s.wslot(m)
        areg, base = (vV, VS[0]) if slot >= VS[0] else (vV0, 0)
        fr = []
        for sg in range(2):
            f = s.alloc(); fr.append(f)
            for jj in range(2): s.rtr(f, jj, areg + ul, slot - base + (2 * sg + jj) * 4096)
        for t in range(3 if ul < 2 else 2):
            d = ('v', acc + t * 32 + ul * 4)
            for sg in range(2): s.mfma(d, fr[sg], ('a', xf + (t * 2 + sg) * 4), 0 if (m & 7) == 0 and sg == 0 else None)
    def qfin(s, u, pair, t):
        acc = (OA if u == 1 else QA) + t * 32 + pair * 8
        for i in range(8): s.valu(f'v_mul_f32 v{acc+i},s{sCS},v{acc+i}', [f'v{acc+i}', f's{sCS}'], [f'v{acc+i}'])
        for i in range(4): s.cvt(acc + i, acc + 2 * i, acc + 2 * i + 1)
        s.swap(16, acc, acc + 2); s.swap(16, acc + 1, acc + 3)
        if t < 2:
            for i in range(4): s.awr(RG(u) + (t * 4 + pair) * 4 + i, acc + i)
        else:
            s.p.add(Op('dsw', f'ds_write_b128 v{vGw},{rr("v",acc,4)}', [f'v{vGw}'] + regs('v', acc, 4), [], cost=5))
    def gather(s, u, first, off=0):
        keep = s.p.ds_after; s.p.ds_after = None
        for sl in range(first, 4):
            if sl: s.valu(f'v_xor_b32 v{GT-1+sl},{sl*1024},v{vGw}', [f'v{vGw}'], [f'v{GT-1+sl}'])
            s.r128(('a', RG(u) + 32 + 4 * sl), GT - 1 + sl if sl else vGw, off)
        s.p.ds_after = keep
    def rowmax(s, src, t):
        a, b = MB + 4 * t, MB + 4 * t + 1
        V = lambda x: f'v{x}'
        s.valu(f'v_max3_f32 v{a},v{src},v{src+1},v{src+2}', regs('v', src, 3), [V(a)])
        s.valu(f'v_max_f32 v{a},v{a},v{src+3}', [V(a), V(src + 3)], [V(a)])
        for n in (16, 32):
            s.valu(f'v_mov_b32 v{b},v{a}', [V(a)], [V(b)])
            s.swap(n, a, b)
            if n == 16: s.valu(f'v_max_f32 v{a},v{a},v{b}', [V(a), V(b)], [V(a)])
            else: s.valu(f'v_min_f32_e64 v{a},-v{a},-v{b}', [V(a), V(b)], [V(a)])
        for i in range(1, 4): s.valu(f'v_mov_b32 v{a+i},v{a}', [V(a)], [V(a + i)])
    def qk(s, n, kt):
        u = n >> 3; init = (n & 7) == 0 and kt == 0
        fr = [s.alloc() for _ in range(4)]
        for sl in range(4): s.r128(fr[sl], vK + sl, KS[n % 3] + kt * 4096)
        sb = SB + (kt & 1) * 8
        for t in range(3 if init else 2):
            d = ('v', sb + 4 * t if t < 2 else SR)
            for sl in range(4):
                s.mfma(d, fr[sl], ('a', RG(u) + (t * 4 + sl) * 4), None if sl else (0 if init else ('v', MB + 4 * t)))
        if init:
            for t in range(3): s.rowmax(sb + 4 * t if t < 2 else SR, t)
            for t in range(2):
                for i in range(4):
                    x = sb + 4 * t + i
                    s.valu(f'v_add_f32 v{x},v{x},v{MB+4*t}', [f'v{x}', f'v{MB+4*t}'], [f'v{x}'])
        for t in range(2):
            x = sb + 4 * t
            for i in range(4): s.exp(x + i)
            d = PB + (n & 1) * 16 + ((kt >> 1) * 2 + t) * 4 + (kt & 1) * 2
            s.cvt(d, x, x + 1); s.cvt(d + 1, x + 2, x + 3)
    def qkr(s, n):
        u = n >> 3
        fr = [s.alloc() for _ in range(4)]
        for sl in range(4): s.r128(fr[sl], vKr + sl, KS[n % 3])
        for sl in range(4): s.mfma(('v', SR), fr[sl], ('a', RG(u) + 32 + sl * 4), None if sl else ('v', MB + 8))
        for i in range(4): s.exp(SR + i)
        s.cvt(PRW, SR, SR + 1); s.cvt(PRW + 1, SR + 2, SR + 3)
    def wr_pr(s, n):
        s.p.add(Op('dsw', f'ds_write_b64 v{vPw},v[{PRW}:{PRW+1}] offset:{(n&1)*2048}', [f'v{vPw}'] + regs('v', PRW, 2), [], cost=3))
    def rd_pr(s, n):
        for sg in range(2): s.r128(('a', aPR + 4 * sg), vL16, (n & 1) * 2048 + sg * 1024)
    def pfrag(s, n, sg, t): return ('v', PB + (n & 1) * 16 + (sg * 2 + t) * 4) if t < 2 else ('a', aPR + 4 * sg)
    def pv(s, n, ul):
        fr = []
        for sg in range(2):
            f = s.alloc(); fr.append(f)
            for jj in range(2): s.rtr(f, jj, vV + ul, VS[n % 2] - VS[0] + (2 * sg + jj) * 4096)
        for t in range(3 if ul < 2 else 2):
            for sg in range(2): s.mfma(('v', OA + t * 32 + ul * 4), fr[sg], s.pfrag(n, sg, t), 0 if (n & 7) == 0 and sg == 0 else None)
    def ones(s, n, ts=(2, 0, 1)):
        for t in ts:
            for sg in range(2): s.mfma(('a', aL + 4 * t), ('a', aONE), s.pfrag(n, sg, t), 0 if (n & 7) == 0 and sg == 0 else None)
    def ofin_l(s, u):
        for t in range(3):
            x = GT + t
            s.valu(f'v_accvgpr_read_b32 v{x},a{aL+4*t}', [f'a{aL+4*t}'], [f'v{x}'])
            s.valu(f'v_rcp_f32 v{x},v{x}', [f'v{x}'], [f'v{x}'], 'trans', 2, prio=8)
    def ofin(s, u, pair, t):
        acc = OA + t * 32 + pair * 8; x = GT + t
        for i in range(8): s.valu(f'v_mul_f32 v{acc+i},v{x},v{acc+i}', [f'v{acc+i}', f'v{x}'], [f'v{acc+i}'])
        for i in range(4): s.cvt(acc + i, acc + 2 * i, acc + 2 * i + 1)
        for i in range(4): s.awr(RG(u) + (t * 4 + pair) * 4 + i, acc + i)
    def ofin_all(s, u):
        s.ofin_l(u)
        s.ofin(u, 0, 2)
        for pair in range(4):
            for t in range(2): s.ofin(u, pair, t)
    def owr(s, u, off=0):
        s.p.add(Op('dsw', f'ds_write_b128 v{vGw},{rr("a",RG(u)+32,4)} offset:{off}', [f'v{vGw}'] + regs('a', RG(u) + 32, 4), [], cost=5))
    def pacc(s, c): return PACC[c]
    def pp(s, n, nl):
        c, u = s.PT[n]
        acc = PACC[c]; slot = s.pslot(n); ar, bs = (vPoA, 0) if slot < 65536 else (vPoB, VS[0])
        fr = []
        for sl in range(4):
            f = s.alloc(); fr.append(f)
            for jj in range(2): s.rtr(f, jj, ar + nl * 4 + sl, slot - bs + jj * 2048)
        for t in range(3 if nl == 0 else 2):
            d = ('v', acc + t * 16 + nl * 4)
            for sl in range(4): s.mfma(d, fr[sl], ('a', RG(u) + (t * 4 + sl) * 4), 0 if u == 0 and sl == 0 and c < 7 else None)
    def pst(s, c, q):
        x = PACC[c] + q * 8; n = 4 if q < 4 else 2
        if q == 0:
            s.salu(f's_add_u32 s3,s5,{c+1}'); s.salu('s_and_b32 s3,s3,7')
            s.salu(f's_mul_i32 s3,s3,147456'); s.salu(f's_add_u32 s{sSO+(c&1)},s3,s{sHS}', wr=[f's{sSO+(c&1)}'])
        for i in range(n): s.cvt(x + i, x + 2 * i, x + 2 * i + 1)
        pol = s.opt.get('stpol', 'sc1').replace('+', ' ')
        sWS_ = sDBG if 's' in s.opt.get('xoff', '') else sWS
        s.here(s.p.add(Op('store', f'buffer_store_dwordx{n} {rr("v",x,n)},v{vSt+(q>>2) if sWS_ == sWS else vSt+1},s[{sWS_}:{sWS_+3}],s{sSO+(c&1)} offen offset:{(q&3)*1024} {pol}',
                          regs('v', x, n) + [f'v{vSt+(q>>2)}', f's{sSO+(c&1)}'], [f'#st{c}'] if q == 4 else [], cost=n + 2, prio=5)))
    def here(s, o):
        if s.lastm is not None: s.p.edge(s.lastm, o)
        return o
    def flagset(s, c):
        if 'f' in s.opt.get('xoff', ''): return
        s.here(s.p.add(Op('store', f'buffer_store_dword v{vOne},v{vZ},s[{sFL}:{sFL+3}],s{sFO} offen offset:{c*128} sc1',
                          [f'v{vOne}', f'v{vZ}', f'#st{c}'], [], cost=2, prio=1)))
    def spin(s, name, ld, cmp):
        s.ool += [f'L_sp{name}:', f's_mov_b32 s{sSPIN},0x40000', f'L_sq{name}:', ld, 's_waitcnt vmcnt(0)'] + cmp + [
                  f's_cbranch_vccnz L_rt{name}', f's_sub_u32 s{sSPIN},s{sSPIN},1', f's_cmp_lg_u32 s{sSPIN},0',
                  f's_cbranch_scc1 L_sq{name}', f's_branch L_rt{name}']
    def poll(s, c):
        t = 90 + (c & 1) if not s.opt.get('stamp') else 4 + 3 * (c & 1)
        s.salu(f's_sub_u32 s3,s5,{c+1}', wr=['s3']); s.salu('s_and_b32 s3,s3,7', wr=['s3'])
        s.salu(f's_lshl_b32 s3,s3,12', wr=['s3']); s.salu(f's_add_u32 s{t},s3,s{sW1K}', wr=[f's{t}'])
        ld = f'buffer_load_dword v{vF+(c&1)},off,s[{sFL}:{sFL+3}],s{t} offset:{c*128} sc1'
        if 'f' not in s.opt.get('xoff', ''): s.here(s.p.add(Op('load', ld, [f's{t}'], [f'v{vF+(c&1)}'], cost=2)))
        s.spin(f'{c}', ld, [f'v_cmp_eq_u32 vcc,1,v{vF+(c&1)}'])
        s.pt = t
    def check(s, c):
        t = 90 + (c & 1) if not s.opt.get('stamp') else 4 + 3 * (c & 1)
        ck = s.here(s.valu(f'v_cmp_eq_u32 vcc,1,v{vF+(c&1)}\n{"s_nop 0" if "c" in s.opt.get("xoff","") else "s_cbranch_vccz L_sp%d" % c}\nL_rt{c}:', [f'v{vF+(c&1)}', f's{t}', '#mk'], ['vcc', f'v{vF+(c&1)}'], cost=2, prio=1))
        s.salu(f's_sub_u32 s3,s5,{c+1}', wr=['s3']); s.salu('s_and_b32 s3,s3,7', wr=['s3'])
        s.salu(f's_mul_i32 s3,s3,18432', wr=['s3']); s.salu(f's_add_u32 s{sLO+(c&1)},s3,s{sHD}', wr=[f's{sLO+(c&1)}'])
        s.ck[c] = ck
    def pld(s, c, q):
        if 'L' in s.opt.get('xoff', ''): return
        L = LAND(c); n = 4 if q < 4 else 2; t2 = sLO + (c & 1)
        sWS_ = sDBG if 'l' in s.opt.get('xoff', '') else sWS
        o = s.here(s.p.add(Op('load', f'buffer_load_dwordx{n} {rr("v",L+4*q,n)},v{vSt+(q>>2) if sWS_ == sWS else vSt+1},s[{sWS_}:{sWS_+3}],s{t2} offen offset:{(q&3)*1024} {s.opt.get("ldpol","sc1").replace("+"," ")}',
                              [f'v{vSt+(q>>2)}', f's{t2}'], regs('v', L + 4 * q, n), cost=2)))
        s.p.edge(s.ck[c], o, states=1)
    def addp(s, c, pk=False):
        L = LAND(c); V = lambda x: f'v{x}'
        for i in ([16, 17] + list(range(16)) if pk else range(18)):
            x = L + i; d = SUM + 2 * i
            if c == 0:
                s.here(s.valu(f'v_lshlrev_b32 v{d},16,v{x}', [V(x)], [V(d)])); s.here(s.valu(f'v_and_b32 v{d+1},0xffff0000,v{x}', [V(x)], [V(d + 1)]))
            elif pk:
                y = QA + 2 * (s.npk % 16); s.npk += 1
                s.here(s.valu(f'v_lshlrev_b32 v{y},16,v{x}', [V(x)], [V(y)])); s.here(s.valu(f'v_and_b32 v{y+1},s{sCS},v{x}', [V(x), f's{sCS}'], [V(y + 1)]))
                s.here(s.valu(f'v_pk_add_f32 v[{d}:{d+1}],v[{d}:{d+1}],v[{y}:{y+1}]', regs('v', d, 2) + regs('v', y, 2), regs('v', d, 2)))
            else:
                y = L + 18 + (i & 1)
                s.here(s.valu(f'v_lshlrev_b32 v{y},16,v{x}', [V(x)], [V(y)])); s.valu(f'v_add_f32 v{d},v{d},v{y}', [V(d), V(y)], [V(d)])
                s.here(s.valu(f'v_and_b32 v{x},s{sCS},v{x}', [V(x), f's{sCS}'], [V(x)])); s.valu(f'v_add_f32 v{d+1},v{d+1},v{x}', [V(d + 1), V(x)], [V(d + 1)])
    def outaddr(s):
        V = lambda x: f'v{x}'
        def op(t, rd, wr): s.valu(t, [V(x) for x in rd], [V(x) for x in wr])
        e, d, f = 207, PRW, PRW + 1; base = s.pslot(28)
        op(f'v_bfe_u32 v{d},v{e},4,4', [e], [d])
        op(f'v_lshrrev_b32 v{f},9,v{e}', [e], [f]); op(f'v_lshl_add_u32 v{f},s{sW},1,v{f}', [f], [f])
        op(f'v_and_b32 v{vTW},7,v{d}', [d], [vTW]); op(f'v_xor_b32 v{f},v{f},v{vTW}', [f, vTW], [f])
        op(f'v_lshlrev_b32 v{f},4,v{f}', [f], [f]); op(f'v_lshl_add_u32 v{f},v{d},7,v{f}', [d, f], [f])
        op(f'v_bfe_u32 v{d},v{e},8,1', [e], [d]); op(f'v_lshl_add_u32 v{f},v{d},3,v{f}', [d, f], [f])
        op(f'v_add_u32 v{f},s{sW4K},v{f}', [f], [f]); op(f'v_add_u32 v{vTW},{base},v{f}', [f], [vTW])
        for nl in range(1, 4): op(f'v_xor_b32 v{vTW+nl},{nl*32},v{vTW}', [vTW], [vTW + nl])
        op(f'v_lshrrev_b32 v{d},7,v{e}', [e], [d])
        op(f'v_lshlrev_b32 v{f},4,v{d}', [d], [f]); op(f'v_xor_b32 v{f},v{f},v{e}', [f, e], [f])
        op(f'v_add_u32 v{f},s{sW4K},v{f}', [f], [f]); op(f'v_add_u32 v{vOut},{base},v{f}', [f], [vOut])
        op(f'v_and_b32 v{f},0x70,v{e}', [e], [f]); op(f'v_lshl_add_u32 v{f},v{d},11,v{f}', [d, f], [f])
        op(f'v_lshl_add_u32 v{vTW+4},s{sW},16,v{f}', [f], [vTW + 4])
        for q in range(1, 4): op(f'v_add_u32 v{vTW+4+q},{q*16384},v{vTW+4}', [vTW + 4], [vTW + 4 + q])
    def outfin(s):
        pol = s.opt.get('opol', '').replace('+', ' ')
        x = SUM + 32
        s.cvt(x, x, x + 1); s.cvt(x + 1, x + 2, x + 3)
        s.p.add(Op('store', f'buffer_store_dwordx2 {rr("v",x,2)},v{vOut+2},s[{sOUT}:{sOUT+3}],0 offen {pol}', regs('v', x, 2) + [f'v{vOut+2}'], [], cost=3))
        for t in range(2):
            for nl in range(4):
                x = SUM + t * 16 + nl * 4
                s.cvt(x, x, x + 1); s.cvt(x + 1, x + 2, x + 3)
                s.p.add(Op('dsw', f'ds_write_b64 v{vTW+nl},v[{x}:{x+1}] offset:{t*2048}', [f'v{vTW+nl}'] + regs('v', x, 2), [f'%o{t}{nl}'], cost=3))
            for q in (2 * t, 2 * t + 1):
                y = QA + 36 + 4 * q
                s.r128(('v', y), vOut, q * 1024, [f'%o{t}{nl}' for nl in range(4)])
                s.p.add(Op('store', f'buffer_store_dwordx4 {rr("v",y,4)},v{vTW+4+q},s[{sOUT}:{sOUT+3}],0 offen {pol}', regs('v', y, 4) + [f'v{vTW+4+q}'], [], cost=5))
    def paddr(s):
        V = lambda x: f'v{x}'
        def op(t, rd, wr): s.valu(t, [V(x) for x in rd], [V(x) for x in wr])
        a, b, c, d = vPoB + 1, vPoB + 2, vPoB + 3, vPoB + 4
        op(f'v_subrev_u32 v{a},{PR},v{vL16}', [vL16], [a])
        op(f'v_lshrrev_b32 v{b},6,v{a}', [a], [b])
        op(f'v_bfe_u32 v{c},v{a},5,1', [a], [c])
        op(f'v_lshl_add_u32 v{c},s{sW},1,v{c}', [c], [c])
        op(f'v_and_b32 v{d},6,v{b}', [b], [d])
        op(f'v_xor_b32 v{c},v{c},v{d}', [c, d], [c])
        op(f'v_lshlrev_b32 v{c},4,v{c}', [c], [c])
        op(f'v_lshl_add_u32 v{c},v{b},7,v{c}', [b, c], [c])
        op(f'v_bfe_u32 v{d},v{a},4,1', [a], [d])
        op(f'v_lshl_add_u32 v{c},v{d},3,v{c}', [c, d], [c])
        op(f'v_add_u32 v{c},s{sW4K},v{c}', [c], [c])
        op(f'v_add_u32 v{vPoB},{VS[0]},v{c}', [c], [vPoB])
        for nl in range(4):
            for sl in range(4):
                if nl or sl: op(f'v_xor_b32 v{vPoB+nl*4+sl},{nl*32+sl*4096},v{vPoB}', [vPoB], [vPoB + nl * 4 + sl])
    def paddr2(s):
        V = lambda x: f'v{x}'
        def op(t, rd, wr): s.valu(t, [V(x) for x in rd], [V(x) for x in wr])
        for k in range(16): op(f'v_subrev_u32 v{vPoA+k},{VS[0]},v{vPoB+k}', [vPoB + k], [vPoA + k])
        e, d = 207, PRW; a, b, c = vOut, vOut + 1, vOut + 2
        op(f'v_subrev_u32 v{e},{PR},v{vL16}', [vL16], [e])
        op(f'v_mov_b32 v{d},s{sW}', [], [d]); op(f'v_mul_u32_u24 v{d},4608,v{d}', [d], [d])
        op(f'v_add_u32 v{vSt},v{e},v{d}', [e, d], [vSt])
        op(f'v_lshrrev_b32 v{vSt+1},1,v{e}', [e], [vSt + 1])
        op(f'v_add_u32 v{vSt+1},v{vSt+1},v{d}', [vSt + 1, d], [vSt + 1]); op(f'v_add_u32 v{vSt+1},4096,v{vSt+1}', [vSt + 1], [vSt + 1])
        op(f'v_bfe_u32 v{b},v{e},4,4', [e], [b]); op(f'v_lshrrev_b32 v{d},8,v{e}', [e], [d])
        op(f'v_lshlrev_b32 v{b},11,v{b}', [b], [b])
        op(f'v_lshlrev_b32 v{c},3,v{d}', [d], [c]); op(f'v_lshl_add_u32 v{c},s{sW},5,v{c}', [c], [c])
        op(f'v_add_u32 v{c},v{c},v{b}', [b, c], [c]); op(f'v_add_u32 v{c},262144,v{c}', [c], [c])
        op(f'v_lshrrev_b32 v{d},9,v{e}', [e], [d]); op(f'v_lshrrev_b32 v{vZ},2,v{e}', [e], [vZ])
        op(f'v_lshl_add_u32 v{vZ},v{d},20,v{vZ}', [d, vZ], [vZ])
        op(f'v_mov_b32 v{vOne},1', [], [vOne])
        s.salu(f's_mov_b32 s{sCS},0xffff0000', wr=[f's{sCS}'])
    def refresh(s, tmp, dst):
        s.nref += 1
        s.valu(f'v_subrev_u32 v{tmp},{GB},v{vGw}', [f'v{vGw}'], [f'v{tmp}'])
        s.valu(f'v_and_b32 v{tmp},0xfc0,v{tmp}', [f'v{tmp}'], [f'v{tmp}'])
        s.salu('s_bfe_u32 s3,s2,0x20003'); s.salu(f's_lshl_b32 s{sSPIN},s3,12', wr=[f's{sSPIN}'])
        s.valu(f'v_add_lshl_u32 v{tmp},s{sSPIN},v{tmp},1', [f'v{tmp}', f's{sSPIN}'], [f'v{tmp}'])
        s.valu(f'v_min_u32 v{tmp},L_end0-L_rf{s.nref},v{tmp}', [f'v{tmp}'], [f'v{tmp}'])
        s.here(s.p.add(Op('load', f's_getpc_b64 s[{sPC}:{sPC+1}]\nL_rf{s.nref}:\nglobal_load_dword v{dst},v{tmp},s[{sPC}:{sPC+1}]', [f'v{tmp}'], [f'v{dst}'], cost=2)))
    def loads(s, order, fn, cnt):
        k = 0
        while k < len(order):
            ch = order[k]; e = k
            while e < len(order) and order[e] == ch: e += 1
            a = cnt.get(ch, 0); cnt[ch] = a + e - k
            if ch == '.': s.p.extra_gap += s.p.DMAGAP * (e - k)
            elif fn.get(ch): fn[ch](range(a, a + e - k))
            k = e

    def build(s):
        opt = s.opt; NE = s.NE
        base = [('a', aPOOL + 4 * i) for i in range(10)]
        A = lambda a, n: [('a', a + 4 * i) for i in range(n)]
        Vq = lambda a, n: [('v', a + 4 * i) for i in range(n)]
        def QF(m, ul, rem=True):
            if m & 7 != 7 or not ul & 1: return
            h = m >> 3
            if ul == 1 and rem: s.qfin(h, 0, 2)
            if h < 2:
                for t in range(2): s.qfin(h, ul >> 1, t)
            else:
                if ul == 7: s.qfin(h, 2, 1)
                for t in range(1 if ul == 5 else 2): s.qfin(h, ul >> 1, t)
        s.pool = base + Vq(SB, 14)
        s.p.DMAGAP = 0
        for k, x in enumerate(opt.get('init', 'X0,W0,r0,S,W8,X1,W1,W9,r1,X2,W2,W10').split(',')):
            if x[0] == 'X': s.ld_x(int(x[1:]))
            elif x[0] == 'W': s.ld_w(int(x[1:]), None)
            elif x[0] == 'r': s.ld_xr(int(x[1:]), None)
            else:
                o = s.salu('@split\n' + '\n'.join(setup_rest(opt)) + '\n@T0', wr=['#srd']); s.p.edge(s.p.last_vm, o)
                n0 = len(s.p.ops)
                setup_late(s)
                for ul in range(8): s.valu(f'v_subrev_u32 v{vV0+ul},{VS[0]},v{vV+ul}', [f'v{vV+ul}'], [f'v{vV0+ul}'])
                s.valu(f'v_subrev_u32 v{SB+4},{PR},v{vL16}', [f'v{vL16}'], [f'v{SB+4}'])
                for i in range(4): s.valu(f'v_mov_b32 v{SB+i},0', [], [f'v{SB+i}'])
                s.p.add(Op('store', f'buffer_store_dwordx4 v[{SB}:{SB+3}],v{SB+4},s[{sFL}:{sFL+3}],s{sFO} offen sc1', regs('v', SB, 5) + ['#srd'], ['#xrst:0'], cost=5, prio=-50))
                for v in s.p.ops[n0:-1]: s.p.edge(o, v); s.p.edge(v, s.p.ops[-1])
            if k == int(opt.get('nb', 5)): last0 = s.p.last_vm; s.p.DMAGAP = float(opt.get('GAP1', 32))
        b = s.bar(['W0', 'X0', 'xr0'], 'Q0'); s.p.edge(last0, b)
        WI = {i: i + 5 for i in range(1, 7)}; WI.update({i: i + 3 for i in range(9, 15)})
        for i, m in enumerate(SEQ):
            prev = b
            if 0 < i < 15:
                nx = SEQ[i + 1]
                b = s.bar([f'W{nx}'] + ([f'xr{nx>>1}'] if nx < 8 else []) + ['xrst'], f'Q{i+1}')
            s.p.ds_after = prev
            if m < 8: s.rd_x(m)
            if i >= 1 and SEQ[i - 1] in (1, 3, 5, 7): s.ld_xr({1: 2, 3: 3, 5: 8, 7: 9}[SEQ[i - 1]], b)
            if m < 5: s.ld_x(m + 3)
            if i in WI: s.ld_w((SEQ + [16, 17])[WI[i]], b)
            if m in (6, 7): s.ld_x(m + 10)
            if i == 4:
                s.salu('s_mul_i32 s3,s2,%s' % opt.get('hash', '0x9e3779b1'), wr=['s3']); s.salu('s_lshr_b32 s3,s3,29', wr=['s3'])
                for k in range(8):
                    s.salu(f's_add_u32 s7,s3,{k}'); s.salu('s_and_b32 s7,s7,7'); s.salu('s_lshl_b32 s7,s7,%d' % (14 if opt.get('kvl', '1') == '0' else 12))
                    if opt.get('kvl') == '2': s.salu(f's_lshl_b32 s{sT+k},s7,2'); s.salu(f's_or_b32 s7,s7,s{sT+k}'); s.salu('s_and_b32 s7,s7,0x13000')
                    s.salu(f's_add_u32 s{sT+k},s7,s{sBK}')
            if i == int(opt.get('k0', 7)): s.ld_kv('K', 0, b)
            if i == int(opt.get('k1', 8)): s.ld_kv('K', 1, b)
            if i == 14 and opt.get('k2', '1') == '1': s.ld_kv('K', 2, b)
            s.tagnext = f'Q{i}'
            for ul in range(8):
                s.qp(m, ul); QF(m, ul, m == 7)
                if i == 0 and ul == 4: b = s.bar([f'W{SEQ[1]}'], 'Q1')
        seg = {J: [] for J in range(33)}
        seg[0].append(('W', 16, range(8)))
        for a, J in ((17, 1), (19, 4), (21, 7), (24, 12), (26, 15), (28, 18), (30, 21)):
            seg[J].append(('W', a, range(5))); seg[J + 1] += [('W', a, range(5, 8)), ('W', a + 1, range(2))]; seg[J + 2].append(('W', a + 1, range(2, 8)))
        seg[10].append(('W', 23, range(5))); seg[11].append(('W', 23, range(5, 8)))
        for n in range(NE):
            if NE == 6: seg[26 + n].append(('O', n, range(4)))
            elif opt.get('pel', '1') == '0': seg[26 + 2 * n].append(('O', n, range(2))); seg[27 + 2 * n].append(('O', n, range(2, 4)))
            else:
                a, k = ((27, 2), (29, 3), (30, 1))[n]
                seg[a].append(('O', n, range(k))); seg[a + 1].append(('O', n, range(k, 4)))
        seg[32].append(('O', NE, range(2)))
        Jf = {}; Jl = {}
        for J in range(33):
            for k, t, g in seg[J]: Jf.setdefault((k, t), J); Jl[(k, t)] = J
        wl = {J: [] for J in range(33)}
        for m in range(18, 32): wl[Jl[('W', m - 2)]].append(('W', m))
        for n in range(NE + 2): wl[Jl[('O', n - 2)] if n >= 2 else (Jf[('O', 0)] - 2 + n if NE else 27 + n)].append(('O', n))
        s.p.DMAGAP = float(opt.get('GAP2', 64))
        o0, o1 = opt.get('order', 'VVVVXXXXO,KKKKWWWWR').split(',')
        bB = None
        for J in range(32):
            u, j = J >> 3, J & 7
            if J < 12: s.pool = base + A(RG(3), 12)
            elif u < 3: s.pool = base + A(RG(0) + 36, 3) + Vq(vSP, 1) + (A(RG(1) + 36, 3) if u == 2 else [])
            else: s.pool = base + (A(RG(2) + 36, 3) if j < 4 else []) + (A(RG(0) + 36, 3) + A(RG(1) + 36, 3) if j == 0 else Vq(QA + 40, 8) if j == 1 or (NE < 6 and j < 7) else [])
            tight = int(opt.get('tight', 1))
            bA = s.bar([f'V{J-1}'] + ([f'K{J+1}:{tight}'] if tight and 2 <= J < 31 else []) if J else ['K0', 'W16', 'X16', 'xr8'], f'A{J}')
            s.p.ds_after = bB
            if J in (0, 2, 12, 24): s.gather({0: 0, 2: 1, 12: 2, 24: 3}[J], 0)
            if J == min(Jf[('O', 0)] - 1, 26): s.gather(0, 1, 4096); s.gather(1, 1, 8192)
            if J == 28: s.gather(2, 1)
            s.tmin = int(opt.get('TMIN', 1050)) if J < 31 else 1
            xs = [t for k, t, g in seg[J] if k == 'W' and Jf[(k, t)] == J]
            for t in xs: s.rd_x(t)
            fn = dict(V=(lambda ps: s.ld_kv('V', J, bA, None, ps)),
                      K=(lambda ps: s.ld_kv('K', J + 2, s.p.last_bar, None, ps)) if J < 30 and (J or opt.get('k2', '1') != '1') else None,
                      X=(lambda ps: s.ld_x(xs[0] + 2, ps)) if xs and xs[0] + 2 < 32 else (lambda ps: s.ld_wo(NE + J - 27, bA, ps)) if J >= 29 else None)
            t0_ = int(opt.get('to', 23))
            def touch(ps):
                s.valu(f'v_subrev_u32 v{vM},{GB},v{vGw}', [f'v{vGw}'], [f'v{vM}']); s.valu(f'v_lshl_add_u32 v{vM},v{vM},3,s{sDO}', [f'v{vM}'], [f'v{vM}'])
                s.salu('s_lshr_b32 s3,s2,4'); s.salu('s_lshl_b32 s3,s3,15'); s.salu(f's_add_u32 s{sWo},s3,s{sBO}', wr=[f's{sWo}'])
                for k, pol in enumerate(opt.get('topol', 'nt,sc1').split(',')):
                    if k: s.p.extra_gap = -s.p.DMAGAP
                    s.p.add(Op('load', f'buffer_load_dword v{vDUM if k else vM+1},v{vM},s[{sWo}:{sWo+3}],0 offen {pol}', [f'v{vM}', f's{sWo}'], [f'v{vDUM if k else vM+1}']))
                s.tbig = int(opt.get('nbig', 2))
            if J == t0_: fn['O'] = touch
            cnt = {}
            s.loads(o0, fn, cnt)
            if J == 23:
                s.salu('s_add_u32 s6,s6,s5')
                s.valu(f'v_add_u32 v{vDX},s{sDXO},v{vDX}', [f'v{vDX}'], [f'v{vDX}'])
                for k in range(8):
                    s.salu(f's_add_u32 s7,s6,{k+1}'); s.salu('s_and_b32 s7,s7,7'); s.salu('s_lshl_b32 s7,s7,7'); s.salu(f's_add_u32 s{sTC+k},s7,s{sBO}')
            if J == 25: s.paddr()
            if str(J) in opt.get('rf', '').split(','): s.refresh(vF, vF + 1)
            if 1 <= J <= 8:
                s.salu(f's_xor_b32 s3,s5,{J-1}'); s.salu(f's_lshl_b32 s3,s3,4'); s.salu(f's_sub_u32 s{sSPIN},s3,{GB}', wr=[f's{sSPIN}'])
                s.valu(f'v_add_lshl_u32 v{vM},s{sSPIN},v{vGw},4', [f'v{vGw}', f's{sSPIN}'], [f'v{vM}'])
                if J == 1: s.valu(f'v_mov_b32 v{vM+1},1', [], [f'v{vM+1}'])
                s.p.edge(bA, s.p.add(Op('store', f'buffer_store_byte v{vM+1},v{vM},s[{sDBG}:{sDBG+3}],s5 offen sc1', regs('v', vM, 2), [], cost=3, prio=50)))
            if J == 19:
                s.valu(f'v_mov_b32 v{vM-1},s{sW4K}', [], [f'v{vM-1}'])
                mk = f'buffer_load_dwordx2 v[{vM}:{vM+1}],v{vM-1},s[{sDBG}:{sDBG+3}],0 offen sc1'
                s.p.add(Op('load', mk, [f'v{vM-1}'], regs('v', vM, 2)))
                s.salu(f's_cmp_eq_u32 s{sW},0\ns_cselect_b32 s{sMK},0x01010101,0', wr=[f's{sMK}'])
            if J == 20:
                cm = [f'v_and_b32 v{vM},v{vM},v{vM+1}', f'v_cmp_eq_u32 vcc,s{sMK},v{vM}']
                mkchk = ('\n'.join(cm) + '\ns_cbranch_vccz L_spm\nL_rtm:', regs('v', vM - 1, 3) + [f's{sMK}'], ['vcc', '#mk'] + regs('v', vM, 2))
                s.spin('m', mk, cm)
            grp = [(k, t, g) for k, t, gs in seg[J] for g in gs]
            def G(a, b_):
                for k, t, g in grp[a:b_]:
                    if k == 'W': s.qp(t, g); QF(t, g, False)
                    else: s.pp(t, g)
            s.tagnext = f'I{J}'; nA = s.nm
            ng = len(grp); h = len(seg[J][0][2]) if len(seg[J]) == 2 else (ng + 1) // 2 if grp and grp[0][2] else ng // 2
            if J == 0:
                G(0, 2); s.qk(J, 0); G(2, 5); s.qkr(J); s.qk(J, 1); G(5, 7); s.qk(J, 2); G(7, 8)
            elif j == 0:
                s.qk(J, 0); G(0, h + 1); s.qkr(J); s.qk(J, 1); G(h + 1, ng)
            else:
                s.qkr(J); s.qk(J, 0); G(0, h); s.qk(J, 1); G(h, ng)
            PV = lambda ul: (lambda: s.pv(J - 1, ul))
            QK = lambda kt: (lambda: s.qk(J, kt))
            OF = lambda pr, n: (lambda: [s.ofin(u - 1, pr, t) for t in range(n)])
            if J == 0: H1 = [QK(3)]
            elif j == 0: H1 = [lambda: s.rd_pr(J - 1), PV(2), lambda: s.ones(J - 1), lambda: s.ofin_l(u - 1), QK(2), PV(3), OF(1, 2), PV(0), PV(1), OF(0, 3),
                               QK(3), PV(4), PV(5), OF(2, 2), PV(6), PV(7), OF(3, 2)]
            else: H1 = [lambda: s.rd_pr(J - 1), PV(2), QK(2), PV(3), PV(0), PV(1), PV(4), QK(3), PV(5), PV(6), PV(7), lambda: s.ones(J - 1)]
            n0 = s.nm - nA; s.p.ds_after = bA
            while J and s.nm - nA + 2 < (n0 + 58) / 2 + int(opt.get('hb', -2)): H1.pop(0)()
            tiles = ([f'K{J+1}'] if J < 31 else []) + ([f'V{J}:{tight}'] if tight and J >= 1 else [])
            for k, t, g in seg[J + 1]:
                if Jf[(k, t)] == J + 1: tiles += [f'{k}{t}'] + ([f'xr{t>>1}'] if k == 'W' else [])
            bB = s.bar(tiles, f'B{J}')
            s.p.ds_after = bA
            s.wr_pr(J)
            if J == 0: s.p.ds_after = bB; s.qfin(1, 0, 2); s.p.ds_after = bA
            if J in (10, 22): s.qfin(2 if J == 10 else 3, 0, 2)
            if J == 24: s.owr(0, 4096); s.owr(1, 8192)
            if J == 26: s.owr(2)
            if J == 20: mkop = s.valu(*mkchk, cost=3, prio=20); s.p.edge(bB, mkop)
            assert len(wl[J]) <= 1
            fn.update(W=None if not wl[J] else (lambda ps: s.ld_w(wl[J][0][1], bB, ps)) if wl[J][0][0] == 'W' else (lambda ps: s.ld_wo(wl[J][0][1], bB, ps)),
                      R=(lambda ps: s.ld_xr((xs[0] + 3) // 2, bB)) if xs and xs[0] & 1 and xs[0] + 3 < 32 else None)
            s.loads(o1, fn, cnt)
            for f in H1: f()
        s.p.DMAGAP = float(opt.get('GAP3', 48))
        s.pool = base
        b = s.bar(['V31', f'O{NE+1}'], 'A32'); s.p.edge(mkop, b)
        s.ld_wo(NE + 5, b); s.ld_wo(NE + 6, b)
        s.p.ds_after = bB
        s.tagnext = 'I32'
        s.pp(NE, 0); s.pp(NE, 1)
        s.p.ds_after = b
        s.rd_pr(31)
        for ul in (0, 1): s.pv(31, ul)
        s.ones(31)
        for ul in range(2, 8): s.pv(31, ul)
        s.ofin_all(3)
        s.pp(NE, 2); s.pp(NE, 3)
        s.paddr2()
        PF = [s.PT.index((c, 3)) + 1 for c in range(7)]
        sp, d1, d2, d3, d4 = [int(x) for x in opt.get('xt', '0,6,8,8,10').split(',')]
        e6 = int(opt.get('e6', 5))
        ev = {}; tail = []
        def at(pos, pri, f): (ev.setdefault(pos, []) if pos < 128 else tail).append((pri, pos, f))
        free = 0; lfree = 0; CH = []; AD = []
        for k in range(7):
            p0 = max(4 * PF[k], free); spk = sp if k < 6 else 0
            if k + 3 < 8 and PACC[k] in PACC[k + 1:]: assert p0 + 4 * spk < 4 * s.PT.index((k + 1 + PACC[k + 1:].index(PACC[k]), 0))
            for q in range(5): at(p0 + q * spk, 3, lambda k=k, q=q: s.pst(k, q))
            free = p0 + 4 * spk + 1
            fs = min(p0 + 4 * spk + (d1 if k < 6 else e6), 127)
            at(fs, 0, lambda k=k: s.flagset(k))
            po = max(fs + d2, CH[k - 2] if k >= 2 else 0)
            ch = max(po + d3, lfree, AD[k - 3] + 6 if k >= 3 else 0)
            if k == 6: po = max(po, 128); ch = max(ch, 129)
            at(po, 2, lambda k=k: s.poll(k)); at(ch, 1, lambda k=k: s.check(k))
            spl = int(opt.get('spl', sp)) if ch < 100 else 0
            for j, q in enumerate((4, 0, 1, 2, 3)): at(ch + j * spl, 1.5 + j * 0.01, lambda k=k, q=q: s.pld(k, q))
            lfree = ch + 4 * spl + 1
            ad = ch + 4 * spl + d4
            if ad > 104: ad = max(ad, 128)
            at(ad, 4, lambda k=k, ad=ad: s.addp(k, ad >= 128))
            CH.append(ch); AD.append(ad)
        dq = []; dpat = opt.get('dpat', '1' * 16)
        for n in range(NE + 1, 32):
            if n == NE + 2: s.pool = base + A(aONE, 6)
            if n == NE + 4: s.pool = base + A(aONE, 6) + Vq(OA + 20, 4)
            prev = b
            if n < 31: b = s.bar([f'O{n+1}'], f'P{n}')
            s.p.ds_after = prev
            if n == NE + 1: s.owr(3); s.ld_wo(NE + 7, b)
            if n == NE + 2: s.gather(3, 1)
            if n == 26: s.outaddr()
            if f'P{n}' in opt.get('rf', '').split(','): s.refresh(207, 209)
            s.tagnext = f'P{n}'
            for q, nl in enumerate((1, 2, 3, 0) if n == NE + 3 else range(4)):
                for pri, pos, f in sorted(ev.get(4 * n + q, []), key=lambda x: x[0]): f()
                dq += [(n + 7, b, p) for p in range(4)] if q == 0 and n + 7 < 32 else []
                ph = (4 * n + q) % 16
                for _ in range(min(len(dq), int(dpat[ph]) if n >= NE + 4 else 1)):
                    t_, b_, p_ = dq.pop(0); s.here(s.ld_wo(t_, b_, [p_]))
                s.pp(n, nl)
        s.p.DMAGAP = 0
        for pri, pos, f in sorted(tail, key=lambda x: (x[1], x[0])): f()
        s.outfin()
        st = opt.get('stamp')
        if st == '1': s.p.stampset = set([f'Q{n}' for n in range(0, 16, 2)] + [f'A{n}' for n in range(33)] + [f'P{n}' for n in range(2, 31, 2)])
        if st == '2': s.p.stampset = set('Q0 A0 A1 A2 A7 A10 A15 A18 A23 A26 A32 P12 P30'.split())
        if st == '5': s.p.stampset = set([f'Q{n}' for n in range(16)] + ['A0', 'B0', 'A1', 'B1', 'A2', 'B2', 'A3'])
        if st == '3': s.p.stampset = set(['A32'] + [f'P{n}' for n in range(31)])
        for k in ('DSSPACE', 'TTMARGIN', 'SAFE', 'ALT'):
            if k in opt: setattr(s.p, k, float(opt[k]))
        return s.p.schedule(stamp=(TMP if st else None))

MACROS = """.macro M d,a,b,c
v_mfma_f32_16x16x32_bf16 \\d,\\a,\\b,\\c
.endm
.macro T d,a,o
ds_read_b64_tr_b16 \\d,\\a offset:\\o
.endm
.macro R d,a,o
ds_read_b128 \\d,\\a offset:\\o
.endm
.macro E d
v_exp_f32_e64 \\d,\\d
.endm
.macro C d,a,b
v_cvt_pk_bf16_f32 \\d,\\a,\\b
.endm
.macro D v,r,o
buffer_load_dwordx4 \\v,\\r,0 offen offset:\\o lds
.endm
.macro Dn v,r,o
buffer_load_dwordx4 \\v,\\r,0 offen offset:\\o nt lds
.endm
"""

def setup_entry(opt):
    L = []; a = L.append
    a('s_cmp_ge_u32 s2,256'); a('s_cbranch_scc0 L_go'); a('s_endpgm'); a('L_go:')
    if opt.get('stamp'): a('s_memtime s[60:61]'); a('s_memrealtime s[90:91]')
    if opt.get('prio'): a('s_setprio %s' % opt['prio'])
    a('s_load_dwordx16 s[64:79],s[0:1],0')
    a('s_load_dwordx8 s[80:87],s[0:1],64')
    a('s_load_dwordx2 s[88:89],s[0:1],96')
    a('s_getpc_b64 s[48:49]'); a('s_bfe_u32 s3,s2,0x40003'); a('s_lshl_b32 s3,s3,13')
    a('v_lshl_add_u32 v1,v0,5,s3'); a('v_min_u32 v1,L_end0-L_go-64,v1'); a(f'global_load_dword v{PRW},v1,s[48:49]')
    a('s_and_b32 s3,s2,7'); a('s_lshr_b32 s4,s3,2')
    a('s_and_b32 s3,s3,3'); a('s_lshl_b32 s3,s3,1'); a('s_bfe_u32 s7,s2,0x10003'); a('s_or_b32 s5,s7,s3')
    a('s_lshr_b32 s6,s2,4')
    a('v_lshrrev_b32 v1,6,v0'); a('v_and_b32 v0,63,v0'); a(f's_mov_b32 s{sFLAG},0'); a(f'v_readfirstlane_b32 s{sW},v1')
    a('s_lshl_b32 s7,s7,2'); a('s_xor_b32 s3,s6,s7'); a('s_and_b32 s3,s3,%s' % opt.get('rmask', '7')); a(f's_lshl_b32 s{sTX},s3,7'); a('s_and_b32 s3,s3,1')
    a('v_and_b32 v2,15,v0')
    a('v_lshrrev_b32 v3,4,v0')
    a('v_lshrrev_b32 v4,3,v0')
    a('v_and_b32 v5,7,v0'); a('v_and_b32 v6,6,v4'); a('v_xor_b32 v5,v5,v6'); a('v_lshlrev_b32 v5,4,v5')
    a(f's_lshl_b32 s{sW4K},s{sW},12'); a(f's_lshl_b32 s{sW1K},s{sW},10')
    a('v_lshl_add_u32 v5,v4,10,v5')
    a(f'v_lshl_add_u32 v{vDX},v1,15,v5')
    a('v_and_b32 v6,1,v1'); a('v_lshrrev_b32 v7,1,v1')
    a('v_xor_b32 v11,s3,v7')
    a('v_lshl_add_u32 v5,v6,13,v5'); a('v_lshl_add_u32 v5,v11,7,v5'); a(f'v_add_u32 v{vDXr},131072,v5')
    a('v_lshlrev_b32 v8,1,v3'); a('v_xor_b32 v8,v2,v8')
    a('v_and_b32 v9,12,v8'); a('v_bfe_u32 v10,v8,1,1'); a('v_or_b32 v9,v9,v10'); a('v_and_b32 v10,1,v8'); a('v_lshl_or_b32 v9,v10,1,v9')
    a('v_lshlrev_b32 v9,4,v9')
    a('v_lshl_add_u32 v10,v6,2,v3'); a('v_lshl_add_u32 v10,v7,5,v10')
    a(f'v_lshl_add_u32 v{vDW},v10,13,v9'); a(f'v_xor_b32 v{vDW+1},128,v{vDW}'); a(f'v_add_u32 v{vDW+1},64512,v{vDW+1}')
    a('v_lshlrev_b32 v9,4,v8'); a('v_lshl_add_u32 v9,v3,8,v9'); a(f'v_lshl_add_u32 v{vDK},v1,%d,v9' % {'0': 12, '1': 15, '2': 14}[opt.get('kvl', '1')]); a(f'v_xor_b32 v{vDK+1},128,v{vDK}')
    a(f's_lshl_b32 s{sTW},s{sTX},12')
    a(f's_mov_b32 s{sX+3},0x20000'); a(f's_mov_b32 s{sWq+3},0x20000')
    a('s_mul_i32 s3,s6,147456'); a('s_lshl_b32 s7,s5,10')
    a('s_cmp_eq_u32 s4,0')
    a('s_waitcnt lgkmcnt(0)')
    for d, x, y in ((sX, 64, 74), (sWq, 70, 80)): a(f's_cselect_b64 s[{d}:{d+1}],s[{x}:{x+1}],s[{y}:{y+1}]')
    for d, off in ((sX, 3), (sWq, 7)): a(f's_add_u32 s{d},s{d},s{off}'); a(f's_addc_u32 s{d+1},s{d+1},0')
    a(f's_and_b32 s{sDXO},s{sX},0x7fff'); a(f's_and_b32 s7,s{sWq},0x3fffff')
    a(f'v_add_u32 v{vDX},s{sDXO},v{vDX}'); a(f'v_add_u32 v{vDW},s7,v{vDW}'); a(f'v_add_u32 v{vDW+1},s7,v{vDW+1}'); a(f'v_add_u32 v{vDXr},s{sDXO},v{vDXr}')
    a(f's_add_u32 s{sX+2},s{sDXO},{143*1024+256}'); a(f's_add_u32 s{sWq+2},s7,{39*8192+256+64512+3072}')
    a(f's_sub_u32 s{sX},s{sX},s{sDXO}'); a(f's_sub_u32 s{sWq},s{sWq},s7')
    a(f's_add_u32 s{sTX},s{sTX},s{sX}'); a(f's_add_u32 s{sTW},s{sTW},s{sWq}')
    return L

def setup_rest(opt):
    L = []; a = L.append; T = sSPIN
    for D in range(1, 8): a(f's_xor_b32 s{sTX+D},s{sTX},{D*128}'); a(f's_xor_b32 s{sTW+D},s{sTW},{D<<19}')
    a(f's_mov_b32 s{sCS},{CSCALE:#x}')
    a('s_cmp_eq_u32 s4,0')
    for d, x, y in ((sK, 66, 76), (sV, 68, 78), (sWo, 72, 82)): a(f's_cselect_b64 s[{d}:{d+1}],s[{x}:{x+1}],s[{y}:{y+1}]')
    def adv(d, off): a(f's_add_u32 s{d},s{d},s{off}'); a(f's_addc_u32 s{d+1},s{d+1},0')
    a('s_lshl_b32 s7,s6,3'); a('s_add_u32 s7,s7,s5'); a('s_lshl_b32 s7,s7,19' if not opt.get('nohbm') else 's_mov_b32 s7,0'); adv(sK, 7); adv(sV, 7)
    a('s_lshl_b32 s7,s5,19'); adv(sWo, 7)
    for d in (sK, sV, sWo): a(f's_mov_b32 s{d+3},0x20000')
    a(f's_and_b32 s3,s{sK},0x7ffff'); a(f's_and_b32 s7,s{sV},0x7ffff'); a(f's_and_b32 s{sDO},s{sWo},0x7ffff')
    a(f'v_add_u32 v{vDV},s7,v{vDK}'); a(f'v_add_u32 v{vDV+1},s7,v{vDK+1}'); a(f'v_add_u32 v{vDK},s3,v{vDK}'); a(f'v_add_u32 v{vDK+1},s3,v{vDK+1}')
    a(f's_add_u32 s{sK+2},s3,102400'); a(f's_add_u32 s{sV+2},s7,102400'); a(f's_add_u32 s{sWo+2},s{sDO},{103*1024+128+3072}')
    a(f's_sub_u32 s{sBK},s{sK},s3'); a(f's_sub_u32 s7,s{sV},s7'); a(f's_sub_u32 s{sDVK},s7,s{sBK}')
    a(f's_sub_u32 s{sBO},s{sWo},s{sDO}'); a(f's_sub_u32 s{sDXO},s{sDO},s{sDXO}')
    a('s_lshl_b32 s3,s4,4'); a('s_add_u32 s3,s3,s6')
    a('s_mul_i32 s7,s3,1179648'); a(f's_add_u32 s{sWS},s88,s7'); a(f's_addc_u32 s{sWS+1},s89,0'); a(f's_mov_b32 s{sWS+2},1179648'); a(f's_mov_b32 s{sWS+3},0x20000')
    a('s_lshl_b32 s7,s3,15'); a(f's_add_u32 s7,s7,{FLOFF}'); a(f's_add_u32 s{sFL},s88,s7'); a(f's_addc_u32 s{sFL+1},s89,0')
    a(f's_mov_b32 s{sFL+2},32768'); a(f's_mov_b32 s{sFL+3},0x20000')
    a('s_mul_i32 s7,s6,294912'); a(f's_lshl_b32 s{T},s4,10'); a(f's_add_u32 s7,s7,s{T}'); a(f's_add_u32 s{T},s5,s6'); a(f's_and_b32 s{T},s{T},7'); a(f's_lshl_b32 s{T},s{T},7'); a(f's_add_u32 s7,s7,s{T}')
    a(f's_add_u32 s{sOUT},s84,s7'); a(f's_addc_u32 s{sOUT+1},s85,0'); a(f's_mov_b32 s{sOUT+2},{143*2048+128}'); a(f's_mov_b32 s{sOUT+3},0x20000')
    a('s_lshl_b32 s7,s3,3'); a(f's_add_u32 s{sDBG},s86,s7'); a(f's_addc_u32 s{sDBG+1},s87,0'); a(f's_mov_b32 s{sDBG+2},16'); a(f's_mov_b32 s{sDBG+3},0x20000')
    a(f's_mul_i32 s{sHS},s5,18432'); a(f's_mul_i32 s{sHD},s5,147456')
    a(f's_lshl_b32 s{sFO},s5,12'); a(f's_add_u32 s{sFO},s{sFO},s{sW1K}')
    return L

def sizes(lines):
    import subprocess, re
    src = '.amdgcn_target "amdgcn-amd-amdhsa--gfx950"\n.text\n' + MACROS + '\n'.join(l for l in lines if l[0] != '@') + '\n'
    open('_sz.s', 'w').write(src)
    subprocess.run(['clang', '-x', 'assembler', '-target', 'amdgcn-amd-amdhsa', '-mcpu=gfx950', '-c', '_sz.s', '-o', '_sz.o'], check=True)
    d = subprocess.run(['llvm-objdump', '-d', '--mcpu=gfx950', '_sz.o'], capture_output=True, text=True).stdout
    sz = [4 * len(m.group(1).split()) for m in re.finditer(r'// [0-9A-F]+: ([0-9A-F ]+)', d)]
    it = iter(sz)
    return [0 if (l[0] == '@' or l.endswith(':')) else next(it) for l in lines]

def paginate(lines, plan, ool):
    sz = sizes(lines + ool + ['L_end0:'])[:len(lines)]
    total = sum(sz); npages = (total + 1200) // 4096
    out = []; pos = 0; back = {}; nxt = 1; done = set()
    for k, (l, z) in enumerate(zip(lines, sz)):
        if l[0] == '@':
            r = plan.get(l[1:], 0)
            nxt = max(nxt, pos // 4096 + 1)
            if r and nxt <= npages:
                out.append(f's_mov_b32 s{sFLAG},1'); pos += 4
                for j in range(r):
                    lab = f'L_bk{l[1:]}_{j}'
                    for w in range(4):
                        if nxt > npages: break
                        out += [f's_cmp_eq_u32 s{sW},{w}', f's_cbranch_scc1 L_pg{nxt}']; pos += 8
                        back[nxt] = lab; nxt += 1
                    out.append(lab + ':')
                out.append(f's_mov_b32 s{sFLAG},0'); pos += 4
            continue
        out.append(l); pos += z
        pg = pos // 4096
        if pg in back and pg not in done and (l[:2] == 'M ' or pos % 4096 >= 40) and not l.startswith(('s_cmp', 's_getpc')):
            if pos % 4096 > 56: print('; late stub', pg, pos % 4096)
            out += [f'L_pg{pg}:', f's_cmp_eq_u32 s{sFLAG},1', f's_cbranch_scc1 {back[pg]}']; pos += 8; done.add(pg)
    for pg in back:
        if pg not in done: out += [f'L_pg{pg}:', f's_cmp_eq_u32 s{sFLAG},1', f's_cbranch_scc1 {back[pg]}']
    return out

def setup_late(g):
    V = lambda x: f'v{x}'
    def op(t, rd, wr): g.valu(t, [V(x) for x in rd], [V(x) for x in wr])
    op('v_and_b32 v8,6,v2', [2], [8]); op('v_xor_b32 v8,v3,v8', [3, 8], [8]); op('v_lshlrev_b32 v8,4,v8', [8], [8])
    op('v_lshl_add_u32 v8,v2,7,v8', [2, 8], [8])
    op(f'v_add_u32 v{vXr},{XR},v8', [8], [vXr]); op(f'v_xor_b32 v{vXr+1},64,v{vXr}', [vXr], [vXr + 1])
    op('v_lshl_add_u32 v8,v1,12,v8', [1, 8], [8])
    op(f'v_add_u32 v{vX},{XWIN},v8', [8], [vX]); op(f'v_xor_b32 v{vX+1},64,v{vX}', [vX], [vX + 1])
    op('v_lshrrev_b32 v9,2,v0', [0], [9])
    op('v_bfe_u32 v10,v0,1,1', [0], [10]); op('v_lshl_add_u32 v10,v1,2,v10', [1, 10], [10])
    op('v_and_b32 v11,7,v9', [9], [11]); op('v_lshlrev_b32 v11,1,v11', [11], [11]); op('v_xor_b32 v10,v10,v11', [10, 11], [10])
    op('v_lshlrev_b32 v10,4,v10', [10], [10]); op('v_lshl_add_u32 v10,v9,8,v10', [9, 10], [10])
    op('v_and_b32 v11,1,v0', [0], [11]); op('v_lshl_add_u32 v10,v11,3,v10', [10, 11], [10])
    op(f'v_add_u32 v{vV},{VS[0]},v10', [10], [vV])
    for ul in range(1, 8):
        op(f'v_xor_b32 v{vV+ul},{ul*32},v{vV}', [vV], [vV + ul])
    op('v_lshl_add_u32 v12,v1,2,v3', [1, 3], [12]); op('v_and_b32 v13,7,v2', [2], [13]); op('v_lshlrev_b32 v13,1,v13', [13], [13])
    op('v_xor_b32 v12,v12,v13', [12, 13], [12]); op('v_lshlrev_b32 v12,4,v12', [12], [12])
    op(f'v_lshl_add_u32 v{vK},v2,8,v12', [2, 12], [vK]); op(f'v_lshl_add_u32 v{vKr},v1,12,v{vK}', [1, vK], [vKr])
    for sl in range(1, 4):
        op(f'v_xor_b32 v{vK+sl},{sl*64},v{vK}', [vK], [vK + sl]); op(f'v_xor_b32 v{vKr+sl},{sl*64},v{vKr}', [vKr], [vKr + sl])
    op('v_lshlrev_b32 v14,4,v0', [0], [14]); op(f'v_add_u32 v{vL16},{PR},v14', [14], [vL16])
    op(f'v_lshl_add_u32 v15,v7,10,v{vL16}', [7, vL16], [15]); op(f'v_lshl_add_u32 v{vPw},v6,3,v15', [6, 15], [vPw])
    op('v_lshl_add_u32 v14,v1,10,v14', [1, 14], [14]); op(f'v_add_u32 v{vGw},{GB},v14', [14], [vGw])
    op('v_mov_b32 v15,0x3f803f80', [], [15])
    for i in range(4): g.awr(aONE + i, 15)

def kd(name, vg, ao, sg=102):
    return f""".amdhsa_kernel {name}
  .amdhsa_next_free_vgpr {vg}
  .amdhsa_next_free_sgpr {sg}
  .amdhsa_accum_offset {ao}
  .amdhsa_group_segment_fixed_size 0
  .amdhsa_kernarg_size 104
  .amdhsa_user_sgpr_count 2
  .amdhsa_user_sgpr_kernarg_segment_ptr 1
  .amdhsa_system_sgpr_workgroup_id_x 1
.end_amdhsa_kernel
"""

def generate(opt):
    g = G(opt)
    body, st = g.build()
    hdr = open('cdna_kernels/' + KN + '.s.ref').read().split('; Override launch')[0]
    s = hdr
    if g.ik: s += f'; @launch grid=(256,1,1) block=(256,1,1) lds={LDS_BYTES}\n'
    else:
        s += f'; @launch kernel={KN}_kernel grid=(256,1,1) block=(256,1,1) lds={LDS_BYTES}\n'
        s += f'; @launch kernel=reduce_kernel grid=(256,1,1) block=(256,1,1) lds=0\n'
    s += '.amdgcn_target "amdgcn-amd-amdhsa--gfx950"\n.text\n' + MACROS.replace(' nt lds', ' ' + opt.get('kvpol', 'nt').replace('+', ' ') + ' lds')
    s += f'.globl {KN}_kernel\n.p2align 8\n.type {KN}_kernel,@function\n{KN}_kernel:\n'
    tail = []
    if opt.get('stamp'):
        n = st['nstamp']
        tail += ['s_memtime s[62:63]', 's_waitcnt vmcnt(0) lgkmcnt(0)']
        for j, r in enumerate((60, 62, 90)): tail.append(f'v_writelane_b32 v{TMP+j},s{r},{n}')
        n += 1
        tail += ['s_memtime s[60:61]', 's_memrealtime s[90:91]', 's_waitcnt lgkmcnt(0)']
        for j, r in enumerate((60, 62, 90)): tail.append(f'v_writelane_b32 v{TMP+j},s{r},{n}')
        tail += ['s_add_u32 s8,s88,0x4000000', 's_addc_u32 s9,s89,0', 's_mov_b32 s10,0x1000000',
                 f's_lshl_b32 s3,s2,2', f's_add_u32 s3,s3,s{sW}', 's_mul_i32 s3,s3,1536',
                 f'v_subrev_u32 v0,{PR},v{vL16}', 'v_lshrrev_b32 v0,2,v0']
        for j in range(3): tail.append(f'buffer_store_dword v{TMP+j},v0,s[8:11],s3 offen offset:{j*512}')
        print('; nstamp', n + 1)
    plan = dict((x.split(':')[0], int(x.split(':')[1])) for x in opt.get('touch', 'T0:3,B13:1,B14:1,B26:1,B27:1').split(',') if x)
    body = [x for l in body for x in l.split('\n')]
    pre = setup_entry(opt)
    if opt.get('fine'):
        k = [56]
        def st_(): k[0] += 1; return ['s_memrealtime s[62:63]', 's_waitcnt lgkmcnt(0)', f'v_writelane_b32 v{TMP+2},s62,{k[0]-1}']
        pre += st_()
        nb_ = []; nd = 0
        for l in body:
            if l == '@split': nb_ += st_() + [l] + st_(); continue
            if l in ('@T0', '@Q0'): nb_ += [l] + st_(); continue
            nb_.append(l)
        body = nb_
    i = body.index('@split')
    main = paginate(body[i + 1:], plan, g.ool)
    s += '\n'.join(pre + body[:i]) + '\ns_branch L_main\n.p2align 12\nL_main:\n' + '\n'.join(main + tail) + '\nL_end0:\ns_endpgm\n' + '\n'.join(g.ool) + '\n'
    if not g.ik: s += '.globl reduce_kernel\n.p2align 8\n.type reduce_kernel,@function\nreduce_kernel:\n' + '\n'.join(reduce_kernel()) + '\n'
    s += '.section .rodata,"a"\n.p2align 6\n' + kd(KN + '_kernel', 512, 256)
    if not g.ik: s += '.p2align 6\n' + kd('reduce_kernel', 224, 224, 32)
    return s

if __name__ == '__main__':
    opt = dict(a.split('=') for a in sys.argv[2:])
    open(sys.argv[1], 'w').write(generate(opt))
```

```python
import sys, struct, math
from sched import *

KN = 'concat_heads__mha_block_cached__gqa_block_cached__near_ridge'
def f2u(x): return struct.unpack('<I', struct.pack('<f', x))[0]
CSCALE = f2u(math.log2(math.e) / math.sqrt(128.0))

KS = [0, 16384, 32768]; XS = [49152, 65536]
VS = [81920, 98304]; WS_ = [114688, 131072]
GB = 147456; XR = GB + 4096; PR = GB + 12288
LDS_BYTES = 163840
XWIN = 32768
OA = 0; QA = 72; SB = 144; SR = 160; PB = 164; MB = 196; PRW = 208
vK = 210; vKr = 214; vV = 218
vX = 226; vXr = 228; vDW = 230; vSP = 232; vDXr = 240
vPw = 242; vL16 = 243; vGw = 244; vDK = 245; vDX = 247; TMP = 248; GT = 251; vF = 254; vDV = 254; vM = 238
vV0 = MB + 4
vDUM = 241
vPoB = 226
vPoA = vK
vSt = 200; vOut = 202; vZ = 205; vOne = 206; SUM = OA + 36; vTW = 164
def LAND(c): return [OA, 180, SB][c % 3]
FLOFF = 40 << 20
PACC = [QA, QA + 36, SB, QA, QA + 36, QA, QA + 36, SUM]
SEQ = [0, 8, 1, 9, 2, 10, 3, 4, 11, 5, 12, 6, 7, 13, 14, 15]
def RG(u): return 48 * u
aONE = 192; aPR = 196; aL = 204; aPOOL = 216
sK = 8; sV = 12; sWq = 16; sX = 20; sWo = 24; sWS = 28; sOUT = 32
sT = 64; sW = 44; sW4K = 45; sW1K = 46; sTW = 36; sTX = 92; sTC = 72
sTMP = 50; sFLAG = 47; sCS = 58; sFL = 80; sDBG = 84; sSPIN = 100; sFO = 101; sHS = 48; sHD = 49; sSO = 36; sLO = 38; sPC = 0; sBK = 50; sDVK = 51; sBO = 52; sDO = 53; sDXO = 54; sMK = 55

def rr(c, a, n): return f'{c}[{a}:{a+n-1}]' if n > 1 else f'{c}{a}'

class G:
    def __init__(s, opt):
        s.p = Prog(); s.opt = opt; s.ik = True
        s.NE = NE = int(opt.get('pe', 3))
        s.PT = {0: [(c, u) for c in range(3) for u in range(4)],
                3: [(0, 0), (0, 1), (0, 2), (1, 0), (1, 1), (1, 2), (0, 3), (1, 3)] + [(2, u) for u in range(4)],
                6: [(0, 0), (1, 0), (0, 1), (1, 1), (0, 2), (1, 2), (2, 0), (2, 1), (2, 2), (0, 3), (1, 3), (2, 3)]}[NE] + [(c, u) for c in range(3, 8) for u in range(4)]
        for k in ('DSLAT', 'DMAGAP'):
            if k in opt: setattr(s.p, k, float(opt[k]))
        s.pool = []; s.lastuse = {}; s.tick = 0; s.stmp = 0; s.tagnext = None; s.lastm = None; s.ool = []; s.ck = {}; s.nref = 0; s.tmin = 1; s.tbig = 0; s.nm = 0; s.mfs = []; s.npk = 0; s.late = []
    def mfma(s, d, a, b, c=None):
        D = regs(d[0], d[1], 4)
        if c == 0: ct = '0'; C = []
        else:
            c = c or d; ct = rr(c[0], c[1], 4); C = regs(c[0], c[1], 4)
        o = Op('mfma', f'M {rr(d[0],d[1],4)},{rr(a[0],a[1],4)},{rr(b[0],b[1],4)},{ct}',
               rd=regs(a[0], a[1], 4) + regs(b[0], b[1], 4) + C, wr=D, crd=C, tag=s.tagnext)
        s.tagnext = None
        s.lastm = o; s.nm += 1; s.mfs.append(o)
        return s.p.add(o)
    def valu(s, text, rd, wr, kind='valu', cost=1, prio=None): return s.p.add(Op(kind, text, rd, wr, cost=cost, prio=prio))
    def salu(s, text, rd=(), wr=()): return s.p.add(Op('salu', text, rd, wr))
    def exp(s, v): return s.valu(f'E v{v}', [f'v{v}'], [f'v{v}'], 'trans', 2)
    def cvt(s, d, a, b): return s.valu(f'C v{d},v{a},v{b}', [f'v{a}', f'v{b}'], [f'v{d}'])
    def swap(s, n, a, b): return s.valu(f'v_permlane{n}_swap_b32 v{a},v{b}', [f'v{a}', f'v{b}'], [f'v{a}', f'v{b}'], 'perm', 2)
    def awr(s, a, v): return s.valu(f'v_accvgpr_write_b32 a{a},v{v}', [f'v{v}'], [f'a{a}'])
    def r128(s, d, addr, off, extra=()):
        assert 0 <= off < 65536, off
        return s.p.add(Op('dsr', f'R {rr(d[0],d[1],4)},v{addr},{off}', [f'v{addr}'] + list(extra), regs(d[0], d[1], 4)))
    def rtr(s, d, half, addr, off):
        assert 0 <= off < 65536, off
        return s.p.add(Op('dsr', f'T {rr(d[0],d[1]+2*half,2)},v{addr},{off}', [f'v{addr}'], regs(d[0], d[1] + 2 * half, 2)))
    def alloc(s):
        q = min(s.pool, key=lambda x: s.lastuse.get(x, -1))
        s.tick += 1; s.lastuse[q] = s.tick
        return q
    def stemp(s):
        s.stmp = (s.stmp + 1) % 2
        return 56 + s.stmp
    def bar(s, tiles, tag=None):
        rd = []
        for t in tiles:
            t, _, n = t.partition(':')
            rd += [f'#{t}:{p}' for p in range(1 if t.startswith('xr') else int(n or 4))]
        for r in rd: assert r in s.p.lastw, r
        s.tbig -= 1; s.tbig += 0
        o = s.p.add(Op('bar', 's_barrier', rd, [], tag=tag, prio=float(s.opt.get('BP', -2)), cost=(3000 if s.tbig >= 0 else s.tmin)))
        if s.tmin > 1: s.p.edge(s.mfs[-int(s.opt.get('pin', 8))], o)
        return o
    def dma(s, name, p, voff, srd, off, pol, after, priv=None):
        wr = [f'#{name}:{p}'] + ([f'${priv}:{p}'] if priv is not None else [])
        o = Op('dma', f'{"Dn" if pol and not (s.opt.get("nohbm") and name[0] in "KV") else "D"} v{voff},s[{srd}:{srd+3}],{off}', [f'v{voff}', f's{srd}', 'm0'], wr)
        s.p.add(o)
        if after is not None: s.p.edge(after, o)
        return o
    def ld_kv(s, which, n, after, priv=None, ps=range(4)):
        u, j = n >> 3, n & 7
        slot = KS[n % 3] if which == 'K' else VS[n % 2]
        s.salu(f's_add_u32 m0,s{sW4K},{slot}', wr=['m0'])
        if ps[0] == 0:
            if which == 'K': s.salu(f's_add_u32 s{sK},s{sT+j},{u*131072}', wr=[f's{sK}'])
            else: s.salu(f's_add_u32 s3,s{sT+j},{u*131072}'); s.salu(f's_add_u32 s{sV},s3,s{sDVK}', wr=[f's{sV}'])
        for p in ps: s.dma(f'{which}{n}', p, (vDK if which == 'K' else vDV) + (p & 1), sK if which == 'K' else sV, 1024 * p, 1, after, priv)
    def pslot(s, n): return WS_[n & 1] if n < s.NE + 2 else [WS_[s.NE & 1], WS_[~s.NE & 1], XS[0], KS[2], KS[0], KS[1], VS[0], VS[1]][(n - s.NE) % 8]
    def wslot(s, m): return ([KS[0], KS[1]] + WS_ + VS + [KS[0], KS[1]] + (WS_ + VS) * 2)[SEQ.index(m)] if m < 16 else WS_[m & 1]
    def xslot(s, m): return [XS[0], XS[1], KS[2]][m % 3] if m < 8 else XS[m & 1]
    def ld_w(s, m, after, ps=range(4)):
        u, D = m >> 3, m & 7
        s.salu(f's_add_u32 m0,s{sW4K},{s.wslot(m)}', wr=['m0'])
        for h in range(2):
            q = [p for p in ps if p >> 1 == h]
            if not q: continue
            s.salu(f's_add_u32 s{sWq},s{sTW+D},{u*256+h*129024}', wr=[f's{sWq}'])
            for p in q: s.dma(f'W{m}', p, vDW + (p & 1), sWq, 1024 * p, (m & 7) < int(s.opt.get('wnt', 0) if m < 16 else 0), after)
    def ld_x(s, m, ps=range(4)):
        D = m & 7; loc = s.xslot(m)
        s.salu(f's_add_u32 m0,s{sW4K},{loc}', wr=['m0'])
        for p in ps:
            s.salu(f's_add_u32 s{sX},s{sTX+D},{7168*p}', wr=[f's{sX}'])
            s.dma(f'X{m}', p, vDX, sX, 1024 * p, m < int(s.opt.get('xnt', 0)), None, loc)
    def ld_xr(s, m2, after):
        s.salu(f's_add_u32 m0,s{sW1K},{XR+(m2&1)*4096}', wr=['m0'])
        s.salu(f's_and_b32 s{sX},s{sTX+((2*m2)&7)},0xffffff7f', wr=[f's{sX}'])
        s.dma(f'xr{m2}', 0, vDXr, sX, 0, 2 * m2 < int(s.opt.get('xnt', 0)), after)
    def ld_wo(s, n, after, ps=range(4)):
        c, u = s.PT[n]
        s.salu(f's_add_u32 m0,s{sW4K},{s.pslot(n)}', wr=['m0'])
        for p in ps:
            s.salu(f's_add_u32 s{sWo},s{sTC+c},{u*131072+7168*p}', wr=[f's{sWo}'])
            o = s.dma(f'O{n}', p, vDX, sWo, 1024 * p, 0, after)
        return o
    def xfrag(s, m): return RG([2, 3, 1, 3][(m & 7) >> 1] if m < 16 else m >> 3) + 24 * (m & 1)
    def rd_x(s, m):
        xf = s.xfrag(m); loc = s.xslot(m)
        for sg in range(2):
            for t in range(2):
                s.r128(('a', xf + (t * 2 + sg) * 4), vX + sg, loc - XWIN + t * 2048, [f'${loc}:{2*t}', f'${loc}:{2*t+1}'])
        for sg in range(2):
            s.r128(('a', xf + 16 + sg * 4), vXr + sg, ((m >> 1) & 1) * 4096 + (m & 1) * 2048)
    def qp(s, m, ul):
        acc = OA if m >> 3 == 1 else QA
        xf = s.xfrag(m); slot = s.wslot(m)
        areg, base = (vV, VS[0]) if slot >= VS[0] else (vV0, 0)
        fr = []
        for sg in range(2):
            f = s.alloc(); fr.append(f)
            for jj in range(2): s.rtr(f, jj, areg + ul, slot - base + (2 * sg + jj) * 4096)
        for t in range(3 if ul < 2 else 2):
            d = ('v', acc + t * 32 + ul * 4)
            for sg in range(2): s.mfma(d, fr[sg], ('a', xf + (t * 2 + sg) * 4), 0 if (m & 7) == 0 and sg == 0 else None)
    def qfin(s, u, pair, t):
        acc = (OA if u == 1 else QA) + t * 32 + pair * 8
        for i in range(8): s.valu(f'v_mul_f32 v{acc+i},s{sCS},v{acc+i}', [f'v{acc+i}', f's{sCS}'], [f'v{acc+i}'])
        for i in range(4): s.cvt(acc + i, acc + 2 * i, acc + 2 * i + 1)
        s.swap(16, acc, acc + 2); s.swap(16, acc + 1, acc + 3)
        if t < 2:
            for i in range(4): s.awr(RG(u) + (t * 4 + pair) * 4 + i, acc + i)
        else:
            s.p.add(Op('dsw', f'ds_write_b128 v{vGw},{rr("v",acc,4)}', [f'v{vGw}'] + regs('v', acc, 4), [], cost=5))
    def gather(s, u, first, off=0):
        keep = s.p.ds_after; s.p.ds_after = None
        for sl in range(first, 4):
            if sl: s.valu(f'v_xor_b32 v{GT-1+sl},{sl*1024},v{vGw}', [f'v{vGw}'], [f'v{GT-1+sl}'])
            s.r128(('a', RG(u) + 32 + 4 * sl), GT - 1 + sl if sl else vGw, off)
        s.p.ds_after = keep
    def rowmax(s, src, t):
        a, b = MB + 4 * t, MB + 4 * t + 1
        V = lambda x: f'v{x}'
        s.valu(f'v_max3_f32 v{a},v{src},v{src+1},v{src+2}', regs('v', src, 3), [V(a)])
        s.valu(f'v_max_f32 v{a},v{a},v{src+3}', [V(a), V(src + 3)], [V(a)])
        for n in (16, 32):
            s.valu(f'v_mov_b32 v{b},v{a}', [V(a)], [V(b)])
            s.swap(n, a, b)
            if n == 16: s.valu(f'v_max_f32 v{a},v{a},v{b}', [V(a), V(b)], [V(a)])
            else: s.valu(f'v_min_f32_e64 v{a},-v{a},-v{b}', [V(a), V(b)], [V(a)])
        for i in range(1, 4): s.valu(f'v_mov_b32 v{a+i},v{a}', [V(a)], [V(a + i)])
    def qk(s, n, kt):
        u = n >> 3; init = (n & 7) == 0 and kt == 0
        fr = [s.alloc() for _ in range(4)]
        for sl in range(4): s.r128(fr[sl], vK + sl, KS[n % 3] + kt * 4096)
        sb = SB + (kt & 1) * 8
        for t in range(3 if init else 2):
            d = ('v', sb + 4 * t if t < 2 else SR)
            for sl in range(4):
                s.mfma(d, fr[sl], ('a', RG(u) + (t * 4 + sl) * 4), None if sl else (0 if init else ('v', MB + 4 * t)))
        if init:
            for t in range(3): s.rowmax(sb + 4 * t if t < 2 else SR, t)
            for t in range(2):
                for i in range(4):
                    x = sb + 4 * t + i
                    s.valu(f'v_add_f32 v{x},v{x},v{MB+4*t}', [f'v{x}', f'v{MB+4*t}'], [f'v{x}'])
        for t in range(2):
            x = sb + 4 * t
            for i in range(4): s.exp(x + i)
            d = PB + (n & 1) * 16 + ((kt >> 1) * 2 + t) * 4 + (kt & 1) * 2
            s.cvt(d, x, x + 1); s.cvt(d + 1, x + 2, x + 3)
    def qkr(s, n):
        u = n >> 3
        fr = [s.alloc() for _ in range(4)]
        for sl in range(4): s.r128(fr[sl], vKr + sl, KS[n % 3])
        for sl in range(4): s.mfma(('v', SR), fr[sl], ('a', RG(u) + 32 + sl * 4), None if sl else ('v', MB + 8))
        for i in range(4): s.exp(SR + i)
        s.cvt(PRW, SR, SR + 1); s.cvt(PRW + 1, SR + 2, SR + 3)
    def wr_pr(s, n):
        s.p.add(Op('dsw', f'ds_write_b64 v{vPw},v[{PRW}:{PRW+1}] offset:{(n&1)*2048}', [f'v{vPw}'] + regs('v', PRW, 2), [], cost=3))
    def rd_pr(s, n):
        for sg in range(2): s.r128(('a', aPR + 4 * sg), vL16, (n & 1) * 2048 + sg * 1024)
    def pfrag(s, n, sg, t): return ('v', PB + (n & 1) * 16 + (sg * 2 + t) * 4) if t < 2 else ('a', aPR + 4 * sg)
    def pv(s, n, ul):
        fr = []
        for sg in range(2):
            f = s.alloc(); fr.append(f)
            for jj in range(2): s.rtr(f, jj, vV + ul, VS[n % 2] - VS[0] + (2 * sg + jj) * 4096)
        for t in range(3 if ul < 2 else 2):
            for sg in range(2): s.mfma(('v', OA + t * 32 + ul * 4), fr[sg], s.pfrag(n, sg, t), 0 if (n & 7) == 0 and sg == 0 else None)
    def ones(s, n, ts=(2, 0, 1)):
        for t in ts:
            for sg in range(2): s.mfma(('a', aL + 4 * t), ('a', aONE), s.pfrag(n, sg, t), 0 if (n & 7) == 0 and sg == 0 else None)
    def ofin_l(s, u):
        for t in range(3):
            x = GT + t
            s.valu(f'v_accvgpr_read_b32 v{x},a{aL+4*t}', [f'a{aL+4*t}'], [f'v{x}'])
            s.valu(f'v_rcp_f32 v{x},v{x}', [f'v{x}'], [f'v{x}'], 'trans', 2, prio=8)
    def ofin(s, u, pair, t):
        acc = OA + t * 32 + pair * 8; x = GT + t
        for i in range(8): s.valu(f'v_mul_f32 v{acc+i},v{x},v{acc+i}', [f'v{acc+i}', f'v{x}'], [f'v{acc+i}'])
        for i in range(4): s.cvt(acc + i, acc + 2 * i, acc + 2 * i + 1)
        for i in range(4): s.awr(RG(u) + (t * 4 + pair) * 4 + i, acc + i)
    def ofin_all(s, u):
        s.ofin_l(u)
        s.ofin(u, 0, 2)
        for pair in range(4):
            for t in range(2): s.ofin(u, pair, t)
    def owr(s, u, off=0):
        s.p.add(Op('dsw', f'ds_write_b128 v{vGw},{rr("a",RG(u)+32,4)} offset:{off}', [f'v{vGw}'] + regs('a', RG(u) + 32, 4), [], cost=5))
    def pacc(s, c): return PACC[c]
    def pp(s, n, nl):
        c, u = s.PT[n]
        acc = PACC[c]; slot = s.pslot(n); ar, bs = (vPoA, 0) if slot < 65536 else (vPoB, VS[0])
        fr = []
        for sl in range(4):
            f = s.alloc(); fr.append(f)
            for jj in range(2): s.rtr(f, jj, ar + nl * 4 + sl, slot - bs + jj * 2048)
        for t in range(3 if nl == 0 else 2):
            d = ('v', acc + t * 16 + nl * 4)
            for sl in range(4): s.mfma(d, fr[sl], ('a', RG(u) + (t * 4 + sl) * 4), 0 if u == 0 and sl == 0 and c < 7 else None)
    def pst(s, c, q):
        x = PACC[c] + q * 8; n = 4 if q < 4 else 2
        if q == 0:
            s.salu(f's_add_u32 s3,s5,{c+1}'); s.salu('s_and_b32 s3,s3,7')
            s.salu(f's_mul_i32 s3,s3,147456'); s.salu(f's_add_u32 s{sSO+(c&1)},s3,s{sHS}', wr=[f's{sSO+(c&1)}'])
        for i in range(n): s.cvt(x + i, x + 2 * i, x + 2 * i + 1)
        pol = s.opt.get('stpol', 'sc1').replace('+', ' ')
        sWS_ = sDBG if 's' in s.opt.get('xoff', '') else sWS
        s.here(s.p.add(Op('store', f'buffer_store_dwordx{n} {rr("v",x,n)},v{vSt+(q>>2) if sWS_ == sWS else vSt+1},s[{sWS_}:{sWS_+3}],s{sSO+(c&1)} offen offset:{(q&3)*1024} {pol}',
                          regs('v', x, n) + [f'v{vSt+(q>>2)}', f's{sSO+(c&1)}'], [f'#st{c}'] if q == 4 else [], cost=n + 2, prio=5)))
    def here(s, o):
        if s.lastm is not None: s.p.edge(s.lastm, o)
        return o
    def flagset(s, c):
        if 'f' in s.opt.get('xoff', ''): return
        s.here(s.p.add(Op('store', f'buffer_store_dword v{vOne},v{vZ},s[{sFL}:{sFL+3}],s{sFO} offen offset:{c*128} sc1',
                          [f'v{vOne}', f'v{vZ}', f'#st{c}'], [], cost=2, prio=1)))
    def spin(s, name, ld, cmp):
        s.ool += [f'L_sp{name}:', f's_mov_b32 s{sSPIN},0x40000', f'L_sq{name}:', ld, 's_waitcnt vmcnt(0)'] + cmp + [
                  f's_cbranch_vccnz L_rt{name}', f's_sub_u32 s{sSPIN},s{sSPIN},1', f's_cmp_lg_u32 s{sSPIN},0',
                  f's_cbranch_scc1 L_sq{name}', f's_branch L_rt{name}']
    def poll(s, c):
        t = 90 + (c & 1) if not s.opt.get('stamp') else 4 + 3 * (c & 1)
        s.salu(f's_sub_u32 s3,s5,{c+1}', wr=['s3']); s.salu('s_and_b32 s3,s3,7', wr=['s3'])
        s.salu(f's_lshl_b32 s3,s3,12', wr=['s3']); s.salu(f's_add_u32 s{t},s3,s{sW1K}', wr=[f's{t}'])
        ld = f'buffer_load_dword v{vF+(c&1)},off,s[{sFL}:{sFL+3}],s{t} offset:{c*128} sc1'
        if 'f' not in s.opt.get('xoff', ''): s.here(s.p.add(Op('load', ld, [f's{t}'], [f'v{vF+(c&1)}'], cost=2)))
        s.spin(f'{c}', ld, [f'v_cmp_eq_u32 vcc,1,v{vF+(c&1)}'])
        s.pt = t
    def check(s, c):
        t = 90 + (c & 1) if not s.opt.get('stamp') else 4 + 3 * (c & 1)
        ck = s.here(s.valu(f'v_cmp_eq_u32 vcc,1,v{vF+(c&1)}\n{"s_nop 0" if "c" in s.opt.get("xoff","") else "s_cbranch_vccz L_sp%d" % c}\nL_rt{c}:', [f'v{vF+(c&1)}', f's{t}', '#mk'], ['vcc', f'v{vF+(c&1)}'], cost=2, prio=1))
        s.salu(f's_sub_u32 s3,s5,{c+1}', wr=['s3']); s.salu('s_and_b32 s3,s3,7', wr=['s3'])
        s.salu(f's_mul_i32 s3,s3,18432', wr=['s3']); s.salu(f's_add_u32 s{sLO+(c&1)},s3,s{sHD}', wr=[f's{sLO+(c&1)}'])
        s.ck[c] = ck
    def pld(s, c, q):
        if 'L' in s.opt.get('xoff', ''): return
        L = LAND(c); n = 4 if q < 4 else 2; t2 = sLO + (c & 1)
        sWS_ = sDBG if 'l' in s.opt.get('xoff', '') else sWS
        o = s.here(s.p.add(Op('load', f'buffer_load_dwordx{n} {rr("v",L+4*q,n)},v{vSt+(q>>2) if sWS_ == sWS else vSt+1},s[{sWS_}:{sWS_+3}],s{t2} offen offset:{(q&3)*1024} {s.opt.get("ldpol","sc1").replace("+"," ")}',
                              [f'v{vSt+(q>>2)}', f's{t2}'], regs('v', L + 4 * q, n), cost=2)))
        s.p.edge(s.ck[c], o, states=1)
    def addp(s, c, pk=False):
        L = LAND(c); V = lambda x: f'v{x}'
        for i in ([16, 17] + list(range(16)) if pk else range(18)):
            x = L + i; d = SUM + 2 * i
            if c == 0:
                s.here(s.valu(f'v_lshlrev_b32 v{d},16,v{x}', [V(x)], [V(d)])); s.here(s.valu(f'v_and_b32 v{d+1},0xffff0000,v{x}', [V(x)], [V(d + 1)]))
            elif pk:
                y = QA + 2 * (s.npk % 16); s.npk += 1
                s.here(s.valu(f'v_lshlrev_b32 v{y},16,v{x}', [V(x)], [V(y)])); s.here(s.valu(f'v_and_b32 v{y+1},s{sCS},v{x}', [V(x), f's{sCS}'], [V(y + 1)]))
                s.here(s.valu(f'v_pk_add_f32 v[{d}:{d+1}],v[{d}:{d+1}],v[{y}:{y+1}]', regs('v', d, 2) + regs('v', y, 2), regs('v', d, 2)))
            else:
                y = L + 18 + (i & 1)
                s.here(s.valu(f'v_lshlrev_b32 v{y},16,v{x}', [V(x)], [V(y)])); s.valu(f'v_add_f32 v{d},v{d},v{y}', [V(d), V(y)], [V(d)])
                s.here(s.valu(f'v_and_b32 v{x},s{sCS},v{x}', [V(x), f's{sCS}'], [V(x)])); s.valu(f'v_add_f32 v{d+1},v{d+1},v{x}', [V(d + 1), V(x)], [V(d + 1)])
    def outaddr(s):
        V = lambda x: f'v{x}'
        def op(t, rd, wr): s.valu(t, [V(x) for x in rd], [V(x) for x in wr])
        e, d, f = 207, PRW, PRW + 1; base = s.pslot(28)
        op(f'v_bfe_u32 v{d},v{e},4,4', [e], [d])
        op(f'v_lshrrev_b32 v{f},9,v{e}', [e], [f]); op(f'v_lshl_add_u32 v{f},s{sW},1,v{f}', [f], [f])
        op(f'v_and_b32 v{vTW},7,v{d}', [d], [vTW]); op(f'v_xor_b32 v{f},v{f},v{vTW}', [f, vTW], [f])
        op(f'v_lshlrev_b32 v{f},4,v{f}', [f], [f]); op(f'v_lshl_add_u32 v{f},v{d},7,v{f}', [d, f], [f])
        op(f'v_bfe_u32 v{d},v{e},8,1', [e], [d]); op(f'v_lshl_add_u32 v{f},v{d},3,v{f}', [d, f], [f])
        op(f'v_add_u32 v{f},s{sW4K},v{f}', [f], [f]); op(f'v_add_u32 v{vTW},{base},v{f}', [f], [vTW])
        for nl in range(1, 4): op(f'v_xor_b32 v{vTW+nl},{nl*32},v{vTW}', [vTW], [vTW + nl])
        op(f'v_lshrrev_b32 v{d},7,v{e}', [e], [d])
        op(f'v_lshlrev_b32 v{f},4,v{d}', [d], [f]); op(f'v_xor_b32 v{f},v{f},v{e}', [f, e], [f])
        op(f'v_add_u32 v{f},s{sW4K},v{f}', [f], [f]); op(f'v_add_u32 v{vOut},{base},v{f}', [f], [vOut])
        op(f'v_and_b32 v{f},0x70,v{e}', [e], [f]); op(f'v_lshl_add_u32 v{f},v{d},11,v{f}', [d, f], [f])
        op(f'v_lshl_add_u32 v{vTW+4},s{sW},16,v{f}', [f], [vTW + 4])
        for q in range(1, 4): op(f'v_add_u32 v{vTW+4+q},{q*16384},v{vTW+4}', [vTW + 4], [vTW + 4 + q])
    def outfin(s):
        pol = s.opt.get('opol', '').replace('+', ' ')
        x = SUM + 32
        s.cvt(x, x, x + 1); s.cvt(x + 1, x + 2, x + 3)
        s.p.add(Op('store', f'buffer_store_dwordx2 {rr("v",x,2)},v{vOut+2},s[{sOUT}:{sOUT+3}],0 offen {pol}', regs('v', x, 2) + [f'v{vOut+2}'], [], cost=3))
        for t in range(2):
            for nl in range(4):
                x = SUM + t * 16 + nl * 4
                s.cvt(x, x, x + 1); s.cvt(x + 1, x + 2, x + 3)
                s.p.add(Op('dsw', f'ds_write_b64 v{vTW+nl},v[{x}:{x+1}] offset:{t*2048}', [f'v{vTW+nl}'] + regs('v', x, 2), [f'%o{t}{nl}'], cost=3))
            for q in (2 * t, 2 * t + 1):
                y = QA + 36 + 4 * q
                s.r128(('v', y), vOut, q * 1024, [f'%o{t}{nl}' for nl in range(4)])
                s.p.add(Op('store', f'buffer_store_dwordx4 {rr("v",y,4)},v{vTW+4+q},s[{sOUT}:{sOUT+3}],0 offen {pol}', regs('v', y, 4) + [f'v{vTW+4+q}'], [], cost=5))
    def paddr(s):
        V = lambda x: f'v{x}'
        def op(t, rd, wr): s.valu(t, [V(x) for x in rd], [V(x) for x in wr])
        a, b, c, d = vPoB + 1, vPoB + 2, vPoB + 3, vPoB + 4
        op(f'v_subrev_u32 v{a},{PR},v{vL16}', [vL16], [a])
        op(f'v_lshrrev_b32 v{b},6,v{a}', [a], [b])
        op(f'v_bfe_u32 v{c},v{a},5,1', [a], [c])
        op(f'v_lshl_add_u32 v{c},s{sW},1,v{c}', [c], [c])
        op(f'v_and_b32 v{d},6,v{b}', [b], [d])
        op(f'v_xor_b32 v{c},v{c},v{d}', [c, d], [c])
        op(f'v_lshlrev_b32 v{c},4,v{c}', [c], [c])
        op(f'v_lshl_add_u32 v{c},v{b},7,v{c}', [b, c], [c])
        op(f'v_bfe_u32 v{d},v{a},4,1', [a], [d])
        op(f'v_lshl_add_u32 v{c},v{d},3,v{c}', [c, d], [c])
        op(f'v_add_u32 v{c},s{sW4K},v{c}', [c], [c])
        op(f'v_add_u32 v{vPoB},{VS[0]},v{c}', [c], [vPoB])
        for nl in range(4):
            for sl in range(4):
                if nl or sl: op(f'v_xor_b32 v{vPoB+nl*4+sl},{nl*32+sl*4096},v{vPoB}', [vPoB], [vPoB + nl * 4 + sl])
    def paddr2(s):
        V = lambda x: f'v{x}'
        def op(t, rd, wr): s.valu(t, [V(x) for x in rd], [V(x) for x in wr])
        for k in range(16): op(f'v_subrev_u32 v{vPoA+k},{VS[0]},v{vPoB+k}', [vPoB + k], [vPoA + k])
        e, d = 207, PRW; a, b, c = vOut, vOut + 1, vOut + 2
        op(f'v_subrev_u32 v{e},{PR},v{vL16}', [vL16], [e])
        op(f'v_mov_b32 v{d},s{sW}', [], [d]); op(f'v_mul_u32_u24 v{d},4608,v{d}', [d], [d])
        op(f'v_add_u32 v{vSt},v{e},v{d}', [e, d], [vSt])
        op(f'v_lshrrev_b32 v{vSt+1},1,v{e}', [e], [vSt + 1])
        op(f'v_add_u32 v{vSt+1},v{vSt+1},v{d}', [vSt + 1, d], [vSt + 1]); op(f'v_add_u32 v{vSt+1},4096,v{vSt+1}', [vSt + 1], [vSt + 1])
        op(f'v_bfe_u32 v{b},v{e},4,4', [e], [b]); op(f'v_lshrrev_b32 v{d},8,v{e}', [e], [d])
        op(f'v_lshlrev_b32 v{b},11,v{b}', [b], [b])
        op(f'v_lshlrev_b32 v{c},3,v{d}', [d], [c]); op(f'v_lshl_add_u32 v{c},s{sW},5,v{c}', [c], [c])
        op(f'v_add_u32 v{c},v{c},v{b}', [b, c], [c]); op(f'v_add_u32 v{c},262144,v{c}', [c], [c])
        op(f'v_lshrrev_b32 v{d},9,v{e}', [e], [d]); op(f'v_lshrrev_b32 v{vZ},2,v{e}', [e], [vZ])
        op(f'v_lshl_add_u32 v{vZ},v{d},20,v{vZ}', [d, vZ], [vZ])
        op(f'v_mov_b32 v{vOne},1', [], [vOne])
        s.salu(f's_mov_b32 s{sCS},0xffff0000', wr=[f's{sCS}'])
    def refresh(s, tmp, dst):
        s.nref += 1
        s.valu(f'v_subrev_u32 v{tmp},{GB},v{vGw}', [f'v{vGw}'], [f'v{tmp}'])
        s.valu(f'v_and_b32 v{tmp},0xfc0,v{tmp}', [f'v{tmp}'], [f'v{tmp}'])
        s.salu('s_bfe_u32 s3,s2,0x20003'); s.salu(f's_lshl_b32 s{sSPIN},s3,12', wr=[f's{sSPIN}'])
        s.valu(f'v_add_lshl_u32 v{tmp},s{sSPIN},v{tmp},1', [f'v{tmp}', f's{sSPIN}'], [f'v{tmp}'])
        s.valu(f'v_min_u32 v{tmp},L_end0-L_rf{s.nref},v{tmp}', [f'v{tmp}'], [f'v{tmp}'])
        s.here(s.p.add(Op('load', f's_getpc_b64 s[{sPC}:{sPC+1}]\nL_rf{s.nref}:\nglobal_load_dword v{dst},v{tmp},s[{sPC}:{sPC+1}]', [f'v{tmp}'], [f'v{dst}'], cost=2)))
    def loads(s, order, fn, cnt):
        k = 0
        while k < len(order):
            ch = order[k]; e = k
            while e < len(order) and order[e] == ch: e += 1
            a = cnt.get(ch, 0); cnt[ch] = a + e - k
            if ch == '.': s.p.extra_gap += s.p.DMAGAP * (e - k)
            elif fn.get(ch): fn[ch](range(a, a + e - k))
            k = e

    def build(s):
        opt = s.opt; NE = s.NE
        base = [('a', aPOOL + 4 * i) for i in range(10)]
        A = lambda a, n: [('a', a + 4 * i) for i in range(n)]
        Vq = lambda a, n: [('v', a + 4 * i) for i in range(n)]
        def QF(m, ul, rem=True):
            if m & 7 != 7 or not ul & 1: return
            h = m >> 3
            if ul == 1 and rem: s.qfin(h, 0, 2)
            if h < 2:
                for t in range(2): s.qfin(h, ul >> 1, t)
            else:
                if ul == 7: s.qfin(h, 2, 1)
                for t in range(1 if ul == 5 else 2): s.qfin(h, ul >> 1, t)
        s.pool = base + Vq(SB, 14)
        s.p.DMAGAP = 0
        for k, x in enumerate(opt.get('init', 'X0,W0,r0,S,W8,X1,W1,W9,r1,X2,W2,W10').split(',')):
            if x[0] == 'X': s.ld_x(int(x[1:]))
            elif x[0] == 'W': s.ld_w(int(x[1:]), None)
            elif x[0] == 'r': s.ld_xr(int(x[1:]), None)
            else:
                o = s.salu('@split\n' + '\n'.join(setup_rest(opt)) + '\n@T0', wr=['#srd']); s.p.edge(s.p.last_vm, o)
                n0 = len(s.p.ops)
                setup_late(s)
                for ul in range(8): s.valu(f'v_subrev_u32 v{vV0+ul},{VS[0]},v{vV+ul}', [f'v{vV+ul}'], [f'v{vV0+ul}'])
                s.valu(f'v_subrev_u32 v{SB+4},{PR},v{vL16}', [f'v{vL16}'], [f'v{SB+4}'])
                for i in range(4): s.valu(f'v_mov_b32 v{SB+i},0', [], [f'v{SB+i}'])
                s.p.add(Op('store', f'buffer_store_dwordx4 v[{SB}:{SB+3}],v{SB+4},s[{sFL}:{sFL+3}],s{sFO} offen sc1', regs('v', SB, 5) + ['#srd'], ['#xrst:0'], cost=5, prio=-50))
                for v in s.p.ops[n0:-1]: s.p.edge(o, v); s.p.edge(v, s.p.ops[-1])
            if k == int(opt.get('nb', 5)): last0 = s.p.last_vm; s.p.DMAGAP = float(opt.get('GAP1', 32))
        b = s.bar(['W0', 'X0', 'xr0'], 'Q0'); s.p.edge(last0, b)
        WI = {i: i + 5 for i in range(1, 7)}; WI.update({i: i + 3 for i in range(9, 15)})
        for i, m in enumerate(SEQ):
            prev = b
            if 0 < i < 15:
                nx = SEQ[i + 1]
                b = s.bar([f'W{nx}'] + ([f'xr{nx>>1}'] if nx < 8 else []) + ['xrst'], f'Q{i+1}')
            s.p.ds_after = prev
            if m < 8: s.rd_x(m)
            if i >= 1 and SEQ[i - 1] in (1, 3, 5, 7): s.ld_xr({1: 2, 3: 3, 5: 8, 7: 9}[SEQ[i - 1]], b)
            if m < 5: s.ld_x(m + 3)
            if i in WI: s.ld_w((SEQ + [16, 17])[WI[i]], b)
            if m in (6, 7): s.ld_x(m + 10)
            if i == 4:
                s.salu('s_mul_i32 s3,s2,%s' % opt.get('hash', '0x9e3779b1'), wr=['s3']); s.salu('s_lshr_b32 s3,s3,29', wr=['s3'])
                for k in range(8):
                    s.salu(f's_add_u32 s7,s3,{k}'); s.salu('s_and_b32 s7,s7,7'); s.salu('s_lshl_b32 s7,s7,%d' % (14 if opt.get('kvl', '1') == '0' else 12))
                    if opt.get('kvl') == '2': s.salu(f's_lshl_b32 s{sT+k},s7,2'); s.salu(f's_or_b32 s7,s7,s{sT+k}'); s.salu('s_and_b32 s7,s7,0x13000')
                    s.salu(f's_add_u32 s{sT+k},s7,s{sBK}')
            if i == int(opt.get('k0', 7)): s.ld_kv('K', 0, b)
            if i == int(opt.get('k1', 8)): s.ld_kv('K', 1, b)
            if i == 14 and opt.get('k2', '1') == '1': s.ld_kv('K', 2, b)
            s.tagnext = f'Q{i}'
            for ul in range(8):
                s.qp(m, ul); QF(m, ul, m == 7)
                if i == 0 and ul == 4: b = s.bar([f'W{SEQ[1]}'], 'Q1')
        seg = {J: [] for J in range(33)}
        seg[0].append(('W', 16, range(8)))
        for a, J in ((17, 1), (19, 4), (21, 7), (24, 12), (26, 15), (28, 18), (30, 21)):
            seg[J].append(('W', a, range(5))); seg[J + 1] += [('W', a, range(5, 8)), ('W', a + 1, range(2))]; seg[J + 2].append(('W', a + 1, range(2, 8)))
        seg[10].append(('W', 23, range(5))); seg[11].append(('W', 23, range(5, 8)))
        for n in range(NE):
            if NE == 6: seg[26 + n].append(('O', n, range(4)))
            elif opt.get('pel', '1') == '0': seg[26 + 2 * n].append(('O', n, range(2))); seg[27 + 2 * n].append(('O', n, range(2, 4)))
            else:
                a, k = ((27, 2), (29, 3), (30, 1))[n]
                seg[a].append(('O', n, range(k))); seg[a + 1].append(('O', n, range(k, 4)))
        seg[32].append(('O', NE, range(2)))
        Jf = {}; Jl = {}
        for J in range(33):
            for k, t, g in seg[J]: Jf.setdefault((k, t), J); Jl[(k, t)] = J
        wl = {J: [] for J in range(33)}
        for m in range(18, 32): wl[Jl[('W', m - 2)]].append(('W', m))
        for n in range(NE + 2): wl[Jl[('O', n - 2)] if n >= 2 else (Jf[('O', 0)] - 2 + n if NE else 27 + n)].append(('O', n))
        s.p.DMAGAP = float(opt.get('GAP2', 64))
        o0, o1 = opt.get('order', 'VVVVXXXXO,KKKKWWWWR').split(',')
        bB = None
        for J in range(32):
            u, j = J >> 3, J & 7
            if J < 12: s.pool = base + A(RG(3), 12)
            elif u < 3: s.pool = base + A(RG(0) + 36, 3) + Vq(vSP, 1) + (A(RG(1) + 36, 3) if u == 2 else [])
            else: s.pool = base + (A(RG(2) + 36, 3) if j < 4 else []) + (A(RG(0) + 36, 3) + A(RG(1) + 36, 3) if j == 0 else Vq(QA + 40, 8) if j == 1 or (NE < 6 and j < 7) else [])
            tight = int(opt.get('tight', 1))
            bA = s.bar([f'V{J-1}'] + ([f'K{J+1}:{tight}'] if tight and 2 <= J < 31 else []) if J else ['K0', 'W16', 'X16', 'xr8'], f'A{J}')
            s.p.ds_after = bB
            if J in (0, 2, 12, 24): s.gather({0: 0, 2: 1, 12: 2, 24: 3}[J], 0)
            if J == min(Jf[('O', 0)] - 1, 26): s.gather(0, 1, 4096); s.gather(1, 1, 8192)
            if J == 28: s.gather(2, 1)
            s.tmin = int(opt.get('TMIN', 1050)) if J < 31 else 1
            xs = [t for k, t, g in seg[J] if k == 'W' and Jf[(k, t)] == J]
            for t in xs: s.rd_x(t)
            fn = dict(V=(lambda ps: s.ld_kv('V', J, bA, None, ps)),
                      K=(lambda ps: s.ld_kv('K', J + 2, s.p.last_bar, None, ps)) if J < 30 and (J or opt.get('k2', '1') != '1') else None,
                      X=(lambda ps: s.ld_x(xs[0] + 2, ps)) if xs and xs[0] + 2 < 32 else (lambda ps: s.ld_wo(NE + J - 27, bA, ps)) if J >= 29 else None)
            t0_ = int(opt.get('to', 99))
            def touch(ps):
                s.valu(f'v_subrev_u32 v{vM},{GB},v{vGw}', [f'v{vGw}'], [f'v{vM}']); s.valu(f'v_lshl_add_u32 v{vM},v{vM},3,s{sDO}', [f'v{vM}'], [f'v{vM}'])
                s.salu('s_lshr_b32 s3,s2,4'); s.salu('s_lshl_b32 s3,s3,15'); s.salu(f's_add_u32 s{sWo},s3,s{sBO}', wr=[f's{sWo}'])
                for k, pol in enumerate(opt.get('topol', 'nt,sc1').split(',')):
                    if k: s.p.extra_gap = -s.p.DMAGAP
                    s.p.add(Op('load', f'buffer_load_dword v{vDUM if k else vM+1},v{vM},s[{sWo}:{sWo+3}],0 offen {pol}', [f'v{vM}', f's{sWo}'], [f'v{vDUM if k else vM+1}']))
                s.tbig = int(opt.get('nbig', 2))
            if J == t0_: fn['O'] = touch
            cnt = {}
            s.loads(o0, fn, cnt)
            if J == 23:
                s.salu('s_add_u32 s6,s6,s5')
                s.valu(f'v_add_u32 v{vDX},s{sDXO},v{vDX}', [f'v{vDX}'], [f'v{vDX}'])
                for k in range(8):
                    s.salu(f's_add_u32 s7,s6,{k+1}'); s.salu('s_and_b32 s7,s7,7'); s.salu('s_lshl_b32 s7,s7,7'); s.salu(f's_add_u32 s{sTC+k},s7,s{sBO}')
            if J == 25: s.paddr()
            if str(J) in opt.get('rf', '').split(','): s.refresh(vF, vF + 1)
            if 1 <= J <= 8:
                s.salu(f's_xor_b32 s3,s5,{J-1}'); s.salu(f's_lshl_b32 s3,s3,4'); s.salu(f's_sub_u32 s{sSPIN},s3,{GB}', wr=[f's{sSPIN}'])
                s.valu(f'v_add_lshl_u32 v{vM},s{sSPIN},v{vGw},4', [f'v{vGw}', f's{sSPIN}'], [f'v{vM}'])
                if J == 1: s.valu(f'v_mov_b32 v{vM+1},1', [], [f'v{vM+1}'])
                s.p.edge(bA, s.p.add(Op('store', f'buffer_store_byte v{vM+1},v{vM},s[{sDBG}:{sDBG+3}],s5 offen sc1', regs('v', vM, 2), [], cost=3, prio=50)))
            if J == 19:
                s.valu(f'v_mov_b32 v{vM-1},s{sW4K}', [], [f'v{vM-1}'])
                mk = f'buffer_load_dwordx2 v[{vM}:{vM+1}],v{vM-1},s[{sDBG}:{sDBG+3}],0 offen sc1'
                s.p.add(Op('load', mk, [f'v{vM-1}'], regs('v', vM, 2)))
                s.salu(f's_cmp_eq_u32 s{sW},0\ns_cselect_b32 s{sMK},0x01010101,0', wr=[f's{sMK}'])
            if J == 20:
                cm = [f'v_and_b32 v{vM},v{vM},v{vM+1}', f'v_cmp_eq_u32 vcc,s{sMK},v{vM}']
                mkchk = ('\n'.join(cm) + '\ns_cbranch_vccz L_spm\nL_rtm:', regs('v', vM - 1, 3) + [f's{sMK}'], ['vcc', '#mk'] + regs('v', vM, 2))
                s.spin('m', mk, cm)
            grp = [(k, t, g) for k, t, gs in seg[J] for g in gs]
            def G(a, b_):
                for k, t, g in grp[a:b_]:
                    if k == 'W': s.qp(t, g); QF(t, g, False)
                    else: s.pp(t, g)
            s.tagnext = f'I{J}'; nA = s.nm
            ng = len(grp); h = len(seg[J][0][2]) if len(seg[J]) == 2 else (ng + 1) // 2 if grp and grp[0][2] else ng // 2
            if J == 0:
                G(0, 2); s.qk(J, 0); G(2, 5); s.qkr(J); s.qk(J, 1); G(5, 7); s.qk(J, 2); G(7, 8)
            elif j == 0:
                s.qk(J, 0); G(0, h + 1); s.qkr(J); s.qk(J, 1); G(h + 1, ng)
            else:
                s.qkr(J); s.qk(J, 0); G(0, h); s.qk(J, 1); G(h, ng)
            PV = lambda ul: (lambda: s.pv(J - 1, ul))
            QK = lambda kt: (lambda: s.qk(J, kt))
            OF = lambda pr, n: (lambda: [s.ofin(u - 1, pr, t) for t in range(n)])
            if J == 0: H1 = [QK(3)]
            elif j == 0: H1 = [lambda: s.rd_pr(J - 1), PV(2), lambda: s.ones(J - 1), lambda: s.ofin_l(u - 1), QK(2), PV(3), OF(1, 2), PV(0), PV(1), OF(0, 3),
                               QK(3), PV(4), PV(5), OF(2, 2), PV(6), PV(7), OF(3, 2)]
            else: H1 = [lambda: s.rd_pr(J - 1), PV(2), QK(2), PV(3), PV(0), PV(1), PV(4), QK(3), PV(5), PV(6), PV(7), lambda: s.ones(J - 1)]
            n0 = s.nm - nA; s.p.ds_after = bA
            while J and s.nm - nA + 2 < (n0 + 58) / 2 + int(opt.get('hb', -2)): H1.pop(0)()
            tiles = ([f'K{J+1}'] if J < 31 else []) + ([f'V{J}:{tight}'] if tight and J >= 1 else [])
            for k, t, g in seg[J + 1]:
                if Jf[(k, t)] == J + 1: tiles += [f'{k}{t}'] + ([f'xr{t>>1}'] if k == 'W' else [])
            bB = s.bar(tiles, f'B{J}')
            s.p.ds_after = bA
            s.wr_pr(J)
            if J == 0: s.p.ds_after = bB; s.qfin(1, 0, 2); s.p.ds_after = bA
            if J in (10, 22): s.qfin(2 if J == 10 else 3, 0, 2)
            if J == 24: s.owr(0, 4096); s.owr(1, 8192)
            if J == 26: s.owr(2)
            if J == 20: mkop = s.valu(*mkchk, cost=3, prio=20); s.p.edge(bB, mkop)
            assert len(wl[J]) <= 1
            fn.update(W=None if not wl[J] else (lambda ps: s.ld_w(wl[J][0][1], bB, ps)) if wl[J][0][0] == 'W' else (lambda ps: s.ld_wo(wl[J][0][1], bB, ps)),
                      R=(lambda ps: s.ld_xr((xs[0] + 3) // 2, bB)) if xs and xs[0] & 1 and xs[0] + 3 < 32 else None)
            s.loads(o1, fn, cnt)
            for f in H1: f()
        s.p.DMAGAP = float(opt.get('GAP3', 48))
        s.pool = base
        b = s.bar(['V31', f'O{NE+1}'], 'A32'); s.p.edge(mkop, b)
        s.ld_wo(NE + 5, b); s.ld_wo(NE + 6, b)
        s.p.ds_after = bB
        s.tagnext = 'I32'
        s.pp(NE, 0); s.pp(NE, 1)
        s.p.ds_after = b
        s.rd_pr(31)
        for ul in (0, 1): s.pv(31, ul)
        s.ones(31)
        for ul in range(2, 8): s.pv(31, ul)
        s.ofin_all(3)
        s.pp(NE, 2); s.pp(NE, 3)
        s.paddr2()
        PF = [s.PT.index((c, 3)) + 1 for c in range(7)]
        sp, d1, d2, d3, d4 = [int(x) for x in opt.get('xt', '0,6,8,8,10').split(',')]
        e6 = int(opt.get('e6', 5))
        ev = {}; tail = []
        def at(pos, pri, f): (ev.setdefault(pos, []) if pos < 128 else tail).append((pri, pos, f))
        free = 0; lfree = 0; CH = []; AD = []
        for k in range(7):
            p0 = max(4 * PF[k], free); spk = sp if k < 6 else 0
            if k + 3 < 8 and PACC[k] in PACC[k + 1:]: assert p0 + 4 * spk < 4 * s.PT.index((k + 1 + PACC[k + 1:].index(PACC[k]), 0))
            for q in range(5): at(p0 + q * spk, 3, lambda k=k, q=q: s.pst(k, q))
            free = p0 + 4 * spk + 1
            fs = min(p0 + 4 * spk + (d1 if k < 6 else e6), 127)
            at(fs, 0, lambda k=k: s.flagset(k))
            po = max(fs + d2, CH[k - 2] if k >= 2 else 0)
            ch = max(po + d3, lfree, AD[k - 3] + 6 if k >= 3 else 0)
            if k == 6: po = max(po, 128); ch = max(ch, 129)
            at(po, 2, lambda k=k: s.poll(k)); at(ch, 1, lambda k=k: s.check(k))
            spl = int(opt.get('spl', sp)) if ch < 100 else 0
            for j, q in enumerate((4, 0, 1, 2, 3)): at(ch + j * spl, 1.5 + j * 0.01, lambda k=k, q=q: s.pld(k, q))
            lfree = ch + 4 * spl + 1
            ad = ch + 4 * spl + d4
            if ad > 104: ad = max(ad, 128)
            at(ad, 4, lambda k=k, ad=ad: s.addp(k, ad >= 128))
            CH.append(ch); AD.append(ad)
        dq = []; dpat = opt.get('dpat', '1' * 16)
        for n in range(NE + 1, 32):
            if n == NE + 2: s.pool = base + A(aONE, 6)
            if n == NE + 4: s.pool = base + A(aONE, 6) + Vq(OA + 20, 4)
            prev = b
            if n < 31: b = s.bar([f'O{n+1}'], f'P{n}')
            s.p.ds_after = prev
            if n == NE + 1: s.owr(3); s.ld_wo(NE + 7, b)
            if n == NE + 2: s.gather(3, 1)
            if n == 26: s.outaddr()
            if f'P{n}' in opt.get('rf', '').split(','): s.refresh(207, 209)
            s.tagnext = f'P{n}'
            for q, nl in enumerate((1, 2, 3, 0) if n == NE + 3 else range(4)):
                for pri, pos, f in sorted(ev.get(4 * n + q, []), key=lambda x: x[0]): f()
                dq += [(n + 7, b, p) for p in range(4)] if q == 0 and n + 7 < 32 else []
                ph = (4 * n + q) % 16
                for _ in range(min(len(dq), int(dpat[ph]) if n >= NE + 4 else 1)):
                    t_, b_, p_ = dq.pop(0); s.here(s.ld_wo(t_, b_, [p_]))
                s.pp(n, nl)
        s.p.DMAGAP = 0
        for pri, pos, f in sorted(tail, key=lambda x: (x[1], x[0])): f()
        s.outfin()
        st = opt.get('stamp')
        if st == '1': s.p.stampset = set([f'Q{n}' for n in range(0, 16, 2)] + [f'A{n}' for n in range(33)] + [f'P{n}' for n in range(2, 31, 2)])
        if st == '2': s.p.stampset = set('Q0 A0 A1 A2 A7 A10 A15 A18 A23 A26 A32 P12 P30'.split())
        if st == '5': s.p.stampset = set([f'Q{n}' for n in range(16)] + ['A0', 'B0', 'A1', 'B1', 'A2', 'B2', 'A3'])
        if st == '3': s.p.stampset = set(['A32'] + [f'P{n}' for n in range(31)])
        for k in ('DSSPACE', 'TTMARGIN', 'SAFE', 'ALT'):
            if k in opt: setattr(s.p, k, float(opt[k]))
        return s.p.schedule(stamp=(TMP if st else None))

MACROS = """.macro M d,a,b,c
v_mfma_f32_16x16x32_bf16 \\d,\\a,\\b,\\c
.endm
.macro T d,a,o
ds_read_b64_tr_b16 \\d,\\a offset:\\o
.endm
.macro R d,a,o
ds_read_b128 \\d,\\a offset:\\o
.endm
.macro E d
v_exp_f32_e64 \\d,\\d
.endm
.macro C d,a,b
v_cvt_pk_bf16_f32 \\d,\\a,\\b
.endm
.macro D v,r,o
buffer_load_dwordx4 \\v,\\r,0 offen offset:\\o lds
.endm
.macro Dn v,r,o
buffer_load_dwordx4 \\v,\\r,0 offen offset:\\o nt lds
.endm
"""

def setup_entry(opt):
    L = []; a = L.append
    a('s_cmp_ge_u32 s2,256'); a('s_cbranch_scc0 L_go'); a('s_endpgm'); a('L_go:')
    if opt.get('stamp'): a('s_memtime s[60:61]'); a('s_memrealtime s[90:91]')
    if opt.get('prio'): a('s_setprio %s' % opt['prio'])
    a('s_load_dwordx16 s[64:79],s[0:1],0')
    a('s_load_dwordx8 s[80:87],s[0:1],64')
    a('s_load_dwordx2 s[88:89],s[0:1],96')
    a('s_getpc_b64 s[48:49]'); a('s_bfe_u32 s3,s2,0x40003'); a('s_lshl_b32 s3,s3,13')
    a('v_lshl_add_u32 v1,v0,5,s3'); a('v_min_u32 v1,L_end0-L_go-64,v1'); a(f'global_load_dword v{PRW},v1,s[48:49]')
    a('s_and_b32 s3,s2,7'); a('s_lshr_b32 s4,s3,2')
    a('s_and_b32 s3,s3,3'); a('s_lshl_b32 s3,s3,1'); a('s_bfe_u32 s7,s2,0x10003'); a('s_or_b32 s5,s7,s3')
    a('s_lshr_b32 s6,s2,4')
    a('v_lshrrev_b32 v1,6,v0'); a('v_and_b32 v0,63,v0'); a(f's_mov_b32 s{sFLAG},0'); a(f'v_readfirstlane_b32 s{sW},v1')
    a('s_lshl_b32 s7,s7,2'); a('s_xor_b32 s3,s6,s7'); a('s_and_b32 s3,s3,%s' % opt.get('rmask', '7')); a(f's_lshl_b32 s{sTX},s3,7'); a('s_and_b32 s3,s3,1')
    a('v_and_b32 v2,15,v0')
    a('v_lshrrev_b32 v3,4,v0')
    a('v_lshrrev_b32 v4,3,v0')
    a('v_and_b32 v5,7,v0'); a('v_and_b32 v6,6,v4'); a('v_xor_b32 v5,v5,v6'); a('v_lshlrev_b32 v5,4,v5')
    a(f's_lshl_b32 s{sW4K},s{sW},12'); a(f's_lshl_b32 s{sW1K},s{sW},10')
    a('v_lshl_add_u32 v5,v4,10,v5')
    a(f'v_lshl_add_u32 v{vDX},v1,15,v5')
    a('v_and_b32 v6,1,v1'); a('v_lshrrev_b32 v7,1,v1')
    a('v_xor_b32 v11,s3,v7')
    a('v_lshl_add_u32 v5,v6,13,v5'); a('v_lshl_add_u32 v5,v11,7,v5'); a(f'v_add_u32 v{vDXr},131072,v5')
    a('v_lshlrev_b32 v8,1,v3'); a('v_xor_b32 v8,v2,v8')
    a('v_and_b32 v9,12,v8'); a('v_bfe_u32 v10,v8,1,1'); a('v_or_b32 v9,v9,v10'); a('v_and_b32 v10,1,v8'); a('v_lshl_or_b32 v9,v10,1,v9')
    a('v_lshlrev_b32 v9,4,v9')
    a('v_lshl_add_u32 v10,v6,2,v3'); a('v_lshl_add_u32 v10,v7,5,v10')
    a(f'v_lshl_add_u32 v{vDW},v10,13,v9'); a(f'v_xor_b32 v{vDW+1},128,v{vDW}'); a(f'v_add_u32 v{vDW+1},64512,v{vDW+1}')
    a('v_lshlrev_b32 v9,4,v8'); a('v_lshl_add_u32 v9,v3,8,v9'); a(f'v_lshl_add_u32 v{vDK},v1,%d,v9' % {'0': 12, '1': 15, '2': 14}[opt.get('kvl', '1')]); a(f'v_xor_b32 v{vDK+1},128,v{vDK}')
    a(f's_lshl_b32 s{sTW},s{sTX},12')
    a(f's_mov_b32 s{sX+3},0x20000'); a(f's_mov_b32 s{sWq+3},0x20000')
    a('s_mul_i32 s3,s6,147456'); a('s_lshl_b32 s7,s5,10')
    a('s_cmp_eq_u32 s4,0')
    a('s_waitcnt lgkmcnt(0)')
    for d, x, y in ((sX, 64, 74), (sWq, 70, 80)): a(f's_cselect_b64 s[{d}:{d+1}],s[{x}:{x+1}],s[{y}:{y+1}]')
    for d, off in ((sX, 3), (sWq, 7)): a(f's_add_u32 s{d},s{d},s{off}'); a(f's_addc_u32 s{d+1},s{d+1},0')
    a(f's_and_b32 s{sDXO},s{sX},0x7fff'); a(f's_and_b32 s7,s{sWq},0x3fffff')
    a(f'v_add_u32 v{vDX},s{sDXO},v{vDX}'); a(f'v_add_u32 v{vDW},s7,v{vDW}'); a(f'v_add_u32 v{vDW+1},s7,v{vDW+1}'); a(f'v_add_u32 v{vDXr},s{sDXO},v{vDXr}')
    a(f's_add_u32 s{sX+2},s{sDXO},{143*1024+256}'); a(f's_add_u32 s{sWq+2},s7,{39*8192+256+64512+3072}')
    a(f's_sub_u32 s{sX},s{sX},s{sDXO}'); a(f's_sub_u32 s{sWq},s{sWq},s7')
    a(f's_add_u32 s{sTX},s{sTX},s{sX}'); a(f's_add_u32 s{sTW},s{sTW},s{sWq}')
    return L

def setup_rest(opt):
    L = []; a = L.append; T = sSPIN
    for D in range(1, 8): a(f's_xor_b32 s{sTX+D},s{sTX},{D*128}'); a(f's_xor_b32 s{sTW+D},s{sTW},{D<<19}')
    a(f's_mov_b32 s{sCS},{CSCALE:#x}')
    a('s_cmp_eq_u32 s4,0')
    for d, x, y in ((sK, 66, 76), (sV, 68, 78), (sWo, 72, 82)): a(f's_cselect_b64 s[{d}:{d+1}],s[{x}:{x+1}],s[{y}:{y+1}]')
    def adv(d, off): a(f's_add_u32 s{d},s{d},s{off}'); a(f's_addc_u32 s{d+1},s{d+1},0')
    a('s_lshl_b32 s7,s6,3'); a('s_add_u32 s7,s7,s5'); a('s_lshl_b32 s7,s7,19' if not opt.get('nohbm') else 's_mov_b32 s7,0'); adv(sK, 7); adv(sV, 7)
    a('s_lshl_b32 s7,s5,19'); adv(sWo, 7)
    for d in (sK, sV, sWo): a(f's_mov_b32 s{d+3},0x20000')
    a(f's_and_b32 s3,s{sK},0x7ffff'); a(f's_and_b32 s7,s{sV},0x7ffff'); a(f's_and_b32 s{sDO},s{sWo},0x7ffff')
    a(f'v_add_u32 v{vDV},s7,v{vDK}'); a(f'v_add_u32 v{vDV+1},s7,v{vDK+1}'); a(f'v_add_u32 v{vDK},s3,v{vDK}'); a(f'v_add_u32 v{vDK+1},s3,v{vDK+1}')
    a(f's_add_u32 s{sK+2},s3,102400'); a(f's_add_u32 s{sV+2},s7,102400'); a(f's_add_u32 s{sWo+2},s{sDO},{103*1024+128+3072}')
    a(f's_sub_u32 s{sBK},s{sK},s3'); a(f's_sub_u32 s7,s{sV},s7'); a(f's_sub_u32 s{sDVK},s7,s{sBK}')
    a(f's_sub_u32 s{sBO},s{sWo},s{sDO}'); a(f's_sub_u32 s{sDXO},s{sDO},s{sDXO}')
    a('s_lshl_b32 s3,s4,4'); a('s_add_u32 s3,s3,s6')
    a('s_mul_i32 s7,s3,1179648'); a(f's_add_u32 s{sWS},s88,s7'); a(f's_addc_u32 s{sWS+1},s89,0'); a(f's_mov_b32 s{sWS+2},1179648'); a(f's_mov_b32 s{sWS+3},0x20000')
    a('s_lshl_b32 s7,s3,15'); a(f's_add_u32 s7,s7,{FLOFF}'); a(f's_add_u32 s{sFL},s88,s7'); a(f's_addc_u32 s{sFL+1},s89,0')
    a(f's_mov_b32 s{sFL+2},32768'); a(f's_mov_b32 s{sFL+3},0x20000')
    a('s_mul_i32 s7,s6,294912'); a(f's_lshl_b32 s{T},s4,10'); a(f's_add_u32 s7,s7,s{T}'); a(f's_add_u32 s{T},s5,s6'); a(f's_and_b32 s{T},s{T},7'); a(f's_lshl_b32 s{T},s{T},7'); a(f's_add_u32 s7,s7,s{T}')
    a(f's_add_u32 s{sOUT},s84,s7'); a(f's_addc_u32 s{sOUT+1},s85,0'); a(f's_mov_b32 s{sOUT+2},{143*2048+128}'); a(f's_mov_b32 s{sOUT+3},0x20000')
    a('s_lshl_b32 s7,s3,3'); a(f's_add_u32 s{sDBG},s86,s7'); a(f's_addc_u32 s{sDBG+1},s87,0'); a(f's_mov_b32 s{sDBG+2},16'); a(f's_mov_b32 s{sDBG+3},0x20000')
    a(f's_mul_i32 s{sHS},s5,18432'); a(f's_mul_i32 s{sHD},s5,147456')
    a(f's_lshl_b32 s{sFO},s5,12'); a(f's_add_u32 s{sFO},s{sFO},s{sW1K}')
    return L

def sizes(lines):
    import subprocess, re
    src = '.amdgcn_target "amdgcn-amd-amdhsa--gfx950"\n.text\n' + MACROS + '\n'.join(l for l in lines if l[0] != '@') + '\n'
    open('_sz.s', 'w').write(src)
    subprocess.run(['clang', '-x', 'assembler', '-target', 'amdgcn-amd-amdhsa', '-mcpu=gfx950', '-c', '_sz.s', '-o', '_sz.o'], check=True)
    d = subprocess.run(['llvm-objdump', '-d', '--mcpu=gfx950', '_sz.o'], capture_output=True, text=True).stdout
    sz = [4 * len(m.group(1).split()) for m in re.finditer(r'// [0-9A-F]+: ([0-9A-F ]+)', d)]
    it = iter(sz)
    return [0 if (l[0] == '@' or l.endswith(':')) else next(it) for l in lines]

def paginate(lines, plan, ool):
    sz = sizes(lines + ool + ['L_end0:'])[:len(lines)]
    total = sum(sz); npages = (total + 1200) // 4096
    out = []; pos = 0; back = {}; nxt = 1; done = set()
    for k, (l, z) in enumerate(zip(lines, sz)):
        if l[0] == '@':
            r = plan.get(l[1:], 0)
            nxt = max(nxt, pos // 4096 + 1)
            if r and nxt <= npages:
                out.append(f's_mov_b32 s{sFLAG},1'); pos += 4
                for j in range(r):
                    lab = f'L_bk{l[1:]}_{j}'
                    for w in range(4):
                        if nxt > npages: break
                        out += [f's_cmp_eq_u32 s{sW},{w}', f's_cbranch_scc1 L_pg{nxt}']; pos += 8
                        back[nxt] = lab; nxt += 1
                    out.append(lab + ':')
                out.append(f's_mov_b32 s{sFLAG},0'); pos += 4
            continue
        out.append(l); pos += z
        pg = pos // 4096
        if pg in back and pg not in done and (l[:2] == 'M ' or pos % 4096 >= 40) and not l.startswith(('s_cmp', 's_getpc')):
            if pos % 4096 > 56: print('; late stub', pg, pos % 4096)
            out += [f'L_pg{pg}:', f's_cmp_eq_u32 s{sFLAG},1', f's_cbranch_scc1 {back[pg]}']; pos += 8; done.add(pg)
    for pg in back:
        if pg not in done: out += [f'L_pg{pg}:', f's_cmp_eq_u32 s{sFLAG},1', f's_cbranch_scc1 {back[pg]}']
    return out

def setup_late(g):
    V = lambda x: f'v{x}'
    def op(t, rd, wr): g.valu(t, [V(x) for x in rd], [V(x) for x in wr])
    op('v_and_b32 v8,6,v2', [2], [8]); op('v_xor_b32 v8,v3,v8', [3, 8], [8]); op('v_lshlrev_b32 v8,4,v8', [8], [8])
    op('v_lshl_add_u32 v8,v2,7,v8', [2, 8], [8])
    op(f'v_add_u32 v{vXr},{XR},v8', [8], [vXr]); op(f'v_xor_b32 v{vXr+1},64,v{vXr}', [vXr], [vXr + 1])
    op('v_lshl_add_u32 v8,v1,12,v8', [1, 8], [8])
    op(f'v_add_u32 v{vX},{XWIN},v8', [8], [vX]); op(f'v_xor_b32 v{vX+1},64,v{vX}', [vX], [vX + 1])
    op('v_lshrrev_b32 v9,2,v0', [0], [9])
    op('v_bfe_u32 v10,v0,1,1', [0], [10]); op('v_lshl_add_u32 v10,v1,2,v10', [1, 10], [10])
    op('v_and_b32 v11,7,v9', [9], [11]); op('v_lshlrev_b32 v11,1,v11', [11], [11]); op('v_xor_b32 v10,v10,v11', [10, 11], [10])
    op('v_lshlrev_b32 v10,4,v10', [10], [10]); op('v_lshl_add_u32 v10,v9,8,v10', [9, 10], [10])
    op('v_and_b32 v11,1,v0', [0], [11]); op('v_lshl_add_u32 v10,v11,3,v10', [10, 11], [10])
    op(f'v_add_u32 v{vV},{VS[0]},v10', [10], [vV])
    for ul in range(1, 8):
        op(f'v_xor_b32 v{vV+ul},{ul*32},v{vV}', [vV], [vV + ul])
    op('v_lshl_add_u32 v12,v1,2,v3', [1, 3], [12]); op('v_and_b32 v13,7,v2', [2], [13]); op('v_lshlrev_b32 v13,1,v13', [13], [13])
    op('v_xor_b32 v12,v12,v13', [12, 13], [12]); op('v_lshlrev_b32 v12,4,v12', [12], [12])
    op(f'v_lshl_add_u32 v{vK},v2,8,v12', [2, 12], [vK]); op(f'v_lshl_add_u32 v{vKr},v1,12,v{vK}', [1, vK], [vKr])
    for sl in range(1, 4):
        op(f'v_xor_b32 v{vK+sl},{sl*64},v{vK}', [vK], [vK + sl]); op(f'v_xor_b32 v{vKr+sl},{sl*64},v{vKr}', [vKr], [vKr + sl])
    op('v_lshlrev_b32 v14,4,v0', [0], [14]); op(f'v_add_u32 v{vL16},{PR},v14', [14], [vL16])
    op(f'v_lshl_add_u32 v15,v7,10,v{vL16}', [7, vL16], [15]); op(f'v_lshl_add_u32 v{vPw},v6,3,v15', [6, 15], [vPw])
    op('v_lshl_add_u32 v14,v1,10,v14', [1, 14], [14]); op(f'v_add_u32 v{vGw},{GB},v14', [14], [vGw])
    op('v_mov_b32 v15,0x3f803f80', [], [15])
    for i in range(4): g.awr(aONE + i, 15)

def kd(name, vg, ao, sg=102):
    return f""".amdhsa_kernel {name}
  .amdhsa_next_free_vgpr {vg}
  .amdhsa_next_free_sgpr {sg}
  .amdhsa_accum_offset {ao}
  .amdhsa_group_segment_fixed_size 0
  .amdhsa_kernarg_size 104
  .amdhsa_user_sgpr_count 2
  .amdhsa_user_sgpr_kernarg_segment_ptr 1
  .amdhsa_system_sgpr_workgroup_id_x 1
.end_amdhsa_kernel
"""

def generate(opt):
    g = G(opt)
    body, st = g.build()
    hdr = open('cdna_kernels/' + KN + '.s.ref').read().split('; Override launch')[0]
    s = hdr
    if g.ik: s += f'; @launch grid=(256,1,1) block=(256,1,1) lds={LDS_BYTES}\n'
    else:
        s += f'; @launch kernel={KN}_kernel grid=(256,1,1) block=(256,1,1) lds={LDS_BYTES}\n'
        s += f'; @launch kernel=reduce_kernel grid=(256,1,1) block=(256,1,1) lds=0\n'
    s += '.amdgcn_target "amdgcn-amd-amdhsa--gfx950"\n.text\n' + MACROS.replace(' nt lds', ' ' + opt.get('kvpol', 'nt').replace('+', ' ') + ' lds')
    s += f'.globl {KN}_kernel\n.p2align 8\n.type {KN}_kernel,@function\n{KN}_kernel:\n'
    tail = []
    if opt.get('stamp'):
        n = st['nstamp']
        tail += ['s_memtime s[62:63]', 's_waitcnt vmcnt(0) lgkmcnt(0)']
        for j, r in enumerate((60, 62, 90)): tail.append(f'v_writelane_b32 v{TMP+j},s{r},{n}')
        n += 1
        tail += ['s_memtime s[60:61]', 's_memrealtime s[90:91]', 's_waitcnt lgkmcnt(0)']
        for j, r in enumerate((60, 62, 90)): tail.append(f'v_writelane_b32 v{TMP+j},s{r},{n}')
        tail += ['s_add_u32 s8,s88,0x4000000', 's_addc_u32 s9,s89,0', 's_mov_b32 s10,0x1000000',
                 f's_lshl_b32 s3,s2,2', f's_add_u32 s3,s3,s{sW}', 's_mul_i32 s3,s3,1536',
                 f'v_subrev_u32 v0,{PR},v{vL16}', 'v_lshrrev_b32 v0,2,v0']
        for j in range(3): tail.append(f'buffer_store_dword v{TMP+j},v0,s[8:11],s3 offen offset:{j*512}')
        if opt.get('probe'):
            tail += ['s_cmp_lg_u32 s2,100', 's_cbranch_scc1 L_end0', f'v_readlane_b32 s4,v{TMP+2},%s' % opt['probe'], 's_nop 4', 's_add_u32 s4,s4,15000', 'L_probe:', 's_memrealtime s[6:7]', 's_waitcnt lgkmcnt(0)',
                     's_sub_u32 s6,s6,s4', 's_cmp_lt_i32 s6,0', 's_cbranch_scc1 L_probe']
        if opt.get('dbgout'):
            tail += ['s_lshr_b32 s3,s2,4', 's_lshl_b32 s3,s3,1', 's_add_u32 s7,s3,1', f'v_readlane_b32 s4,v{TMP+2},0', f'v_readlane_b32 s6,v{TMP+2},s3', f'v_readlane_b32 s7,v{TMP+2},s7',
                     's_sub_u32 s6,s6,s4', 's_sub_u32 s7,s7,s4', 'v_mov_b32 v2,s6', 'v_mov_b32 v3,s7', 's_and_b32 s3,s2,15', 's_lshl_b32 s3,s3,8',
                     f'v_subrev_u32 v1,{GB},v{vGw}', 'v_add_u32 v1,s3,v1', f'buffer_store_dwordx2 v[2:3],v1,s[{sDBG}:{sDBG+3}],0 offen sc1']
        print('; nstamp', n + 1)
    plan = dict((x.split(':')[0], int(x.split(':')[1])) for x in opt.get('touch', 'T0:3,B13:1,B14:1,B26:1,B27:1').split(',') if x)
    body = [x for l in body for x in l.split('\n')]
    pre = setup_entry(opt)
    if opt.get('fine'):
        k = [56]
        def st_(): k[0] += 1; return ['s_memrealtime s[62:63]', 's_waitcnt lgkmcnt(0)', f'v_writelane_b32 v{TMP+2},s62,{k[0]-1}']
        pre += st_()
        nb_ = []; nd = 0
        for l in body:
            if l == '@split': nb_ += st_() + [l] + st_(); continue
            if l in ('@T0', '@Q0'): nb_ += [l] + st_(); continue
            nb_.append(l)
        body = nb_
    i = body.index('@split')
    main = paginate(body[i + 1:], plan, g.ool)
    s += '\n'.join(pre + body[:i]) + '\ns_branch L_main\n.p2align 12\nL_main:\n' + '\n'.join(main + tail) + '\nL_end0:\ns_endpgm\n' + '\n'.join(g.ool) + '\n'
    if not g.ik: s += '.globl reduce_kernel\n.p2align 8\n.type reduce_kernel,@function\nreduce_kernel:\n' + '\n'.join(reduce_kernel()) + '\n'
    s += '.section .rodata,"a"\n.p2align 6\n' + kd(KN + '_kernel', 512, 256)
    if not g.ik: s += '.p2align 6\n' + kd('reduce_kernel', 224, 224, 32)
    return s

if __name__ == '__main__':
    opt = dict(a.split('=') for a in sys.argv[2:])
    open(sys.argv[1], 'w').write(generate(opt))
```
